```python
import torch

def _softmax(x, axis=-1):
    return torch.softmax(x, dim=axis)
def _gelu(x):
    return torch.nn.functional.gelu(x, approximate="tanh")
def _silu(x):
    return torch.nn.functional.silu(x)
def _sigmoid(x):
    return torch.sigmoid(x)
def _layernorm(x, axis=-1, eps=1e-5):
    m = x.mean(dim=axis, keepdim=True)
    v = x.var(dim=axis, keepdim=True, unbiased=False)
    return (x - m) / torch.sqrt(v + eps)
def _scatter_add(tgt, idx, src, axis=0):
    return tgt.clone().index_add_(axis, idx, src)
def _segment_sum(src, seg, n):
    out = torch.zeros((n,) + src.shape[1:], dtype=src.dtype)
    return out.index_add_(0, seg, src)
def _pad(x, pw):
    flat = tuple(v for pair in reversed(pw) for v in pair)
    return torch.nn.functional.pad(x, flat)

kernel_name = 'sequential_preLN__softmax_full_mha__glu_gated_reglu__prompt'

def setup_inputs():

    _w = (lambda a: (lambda t: t.to(torch.bfloat16) if t.is_floating_point() else t)(torch.as_tensor(a)))
    def _A_setup():
        B, S, D = 1, 2048, 512
        return {
            "x": _w((lambda *s: torch.randn(*s, dtype=torch.bfloat16) * 0.05)(B, S, D)),
            "wqkv": _w((lambda *s: torch.randn(*s, dtype=torch.bfloat16) * 0.05)(D, 3 * D)),
            "wo": _w((lambda *s: torch.randn(*s, dtype=torch.bfloat16) * 0.05)(D, D)),
        }
    _A_in = _A_setup()

    def _B_setup():
        B, S, D, F = 1, 2048, 512, 1376
        return {
            "x": _w((lambda *s: torch.randn(*s, dtype=torch.bfloat16) * 0.05)(B, S, D)),
            "W_gate": _w((lambda *s: torch.randn(*s, dtype=torch.bfloat16) * 0.4)(D, F) * (2.0 / D) ** 0.5),
            "W_up": _w((lambda *s: torch.randn(*s, dtype=torch.bfloat16) * 0.4)(D, F) * (2.0 / D) ** 0.5),
            "W_down": _w((lambda *s: torch.randn(*s, dtype=torch.bfloat16) * 0.4)(F, D) * (1.0 / F) ** 0.5),
        }
    _B_in = _B_setup()

    return {
        "A_x": _A_in["x"],
        "A_wqkv": _A_in["wqkv"],
        "A_wo": _A_in["wo"],
        "B_x": _B_in["x"],
        "B_W_gate": _B_in["W_gate"],
        "B_W_up": _B_in["W_up"],
        "B_W_down": _B_in["W_down"],
    }

def reference(A_x, A_wqkv, A_wo, B_x, B_W_gate, B_W_up, B_W_down):
    def _A_ref(x, wqkv, wo):
        B, S, D = x.shape
        H = 32; Dh = D // H
        qkv = (lambda x, *d: x.permute(*d))((x @ wqkv).reshape(B, S, 3, H, Dh), 2, 0, 3, 1, 4)
        q, k, v = qkv[0], qkv[1], qkv[2]
        scale = Dh ** -0.5
        scores = torch.einsum("bhqd,bhkd->bhqk", q, k) * scale
        p = _softmax(scores, axis=-1)
        o = torch.einsum("bhqk,bhkd->bhqd", p, v)
        return (lambda x, *d: x.permute(*d))(o, 0, 2, 1, 3).reshape(B, S, D) @ wo

    def _B_ref(x, W_gate, W_up, W_down):
        gate = torch.einsum("bsd,df->bsf", x, W_gate)
        up = torch.einsum("bsd,df->bsf", x, W_up)
        gate = gate * (lambda x, dt: x.to(dt))(gate > 0, gate.dtype)
        h = gate * up
        return torch.einsum("bsf,fd->bsd", h, W_down)

    x = A_x
    h = x + _A_ref(_layernorm(x, axis=-1), A_wqkv, A_wo)
    h2 = h + _B_ref(_layernorm(h, axis=-1), B_W_gate, B_W_up, B_W_down)
    return h2
```

```python
QF = 0x000000
KF = 0x200000
VF = 0x400000
OF = 0x600000
HF = 0x800000
ST = 0xA00000
GF = 0xB00000
WS_END = GF + 64 * 86 * 1024
KA_X, KA_WQKV, KA_WO, KA_BX, KA_WG, KA_WU, KA_WD, KA_OUT, KA_DBG, KA_WS = [8 * i for i in range(10)]

class Asm:
    def __init__(self):
        self.L = []
        self.uid = 0
    def __call__(self, *txt):
        for t in txt:
            for line in t.split("\n"):
                self.L.append("    " + line.strip())
    def label(self, n):
        self.L.append(n + ":")
    def raw(self, t):
        self.L.append(t)
    def newlabel(self, p):
        self.uid += 1
        return f"L_{p}_{self.uid}"
    def text(self):
        return "\n".join(self.L) + "\n"

def v(a, n=1):
    return f"v{a}" if n == 1 else f"v[{a}:{a+n-1}]"
def s(a, n=1):
    return f"s{a}" if n == 1 else f"s[{a}:{a+n-1}]"

def srd(a, d, ptr, size):
    a(f"s_mov_b32 s{d}, s{ptr}", f"s_and_b32 s{d+1}, s{ptr+1}, 0xffff",
      f"s_mov_b32 s{d+2}, {size:#x}", f"s_mov_b32 s{d+3}, 0x20000")

def kernel_head(a, name):
    a.raw(f".globl {name}")
    a.raw(".p2align 8")
    a.raw(f".type {name},@function")
    a.label(name)

def kernel_desc(name, vgpr, sgpr=96, accum=None):
    if accum is None:
        accum = (vgpr + 3) // 4 * 4
    return f""".p2align 6
.amdhsa_kernel {name}
  .amdhsa_next_free_vgpr {vgpr}
  .amdhsa_next_free_sgpr {sgpr}
  .amdhsa_accum_offset {accum}
  .amdhsa_group_segment_fixed_size 0
  .amdhsa_kernarg_size 80
  .amdhsa_user_sgpr_count 2
  .amdhsa_user_sgpr_kernarg_segment_ptr 1
  .amdhsa_system_sgpr_workgroup_id_x 1
.end_amdhsa_kernel
"""

def mfma32(d, a_, b, c=None):
    c = v(d, 16) if c is None else c
    return f"v_mfma_f32_32x32x16_bf16 {v(d,16)}, {v(a_,4)}, {v(b,4)}, {c}"
def mfma16(d, a_, b):
    return f"v_mfma_f32_16x16x32_bf16 {v(d,4)}, {v(a_,4)}, {v(b,4)}, {v(d,4)}"

def make_sel(a, vsel, lane, t0, t1):
    a(f"v_and_b32 v{t0}, 15, v{lane}",
      f"v_bfe_u32 v{t1}, v{lane}, 4, 1",
      f"v_cmp_eq_u32 vcc, v{t0}, v{t1}",
      f"v_mov_b32 v{t0}, 0x3f803f80",
      "s_nop 1",
      f"v_cndmask_b32 v{vsel}, 0, v{t0}, vcc")
    for i in range(1, 4):
        a(f"v_mov_b32 v{vsel+i}, v{vsel}")
```

```python
from common import *
import math
NAME = "qkv_kernel"
LDS = 131072
def gen(a):
    kernel_head(a, NAME)
    done = "L_k1_done"
    a("s_cmp_ge_u32 s2, 256", f"s_cbranch_scc1 {done}")
    a(f"s_load_dwordx4 s[4:7], s[0:1], {KA_X}", f"s_load_dwordx2 s[8:9], s[0:1], {KA_WS}")
    sX, sJ, sWv, sC, sT0, sT1 = 24, 25, 26, 27, 28, 29
    sXo, sWo, sM, sG, sMt, sSlot = 30, 31, 32, 33, 34, 35
    lane, t0, t1, t2 = 1, 5, 6, 7
    vXa, vXb, vW = 2, 3, 4
    vXA = [8, 9, 10, 11]; vWA = [12, 13, 14, 15]
    vSel = 16
    xf = [20, 24]; wf = [[28, 32, 36], [40, 44, 48]]
    s1 = 52; cacc = [56, 60, 64]; s2l, s2h = 68, 69; tmp = 70
    accQ, accK, accV = 80, 96, 112
    a(f"s_and_b32 s{sX}, s2, 7", f"s_lshr_b32 s{sJ}, s2, 3")
    a(f"v_lshrrev_b32 v{t0}, 6, v0", f"v_and_b32 v{lane}, 63, v0", f"v_readfirstlane_b32 s{sWv}, v{t0}")
    a(f"v_lshrrev_b32 v{t0}, 3, v{lane}",
      f"v_and_b32 v{t1}, 7, v{lane}",
      f"v_lshrrev_b32 v{t2}, 4, v{lane}",
      f"v_xor_b32 v{vXa}, v{t1}, v{t2}",
      f"v_xor_b32 v{vXb}, 4, v{vXa}",
      f"v_lshlrev_b32 v{vXa}, 4, v{vXa}",
      f"v_lshlrev_b32 v{vXb}, 4, v{vXb}",
      f"v_lshl_add_u32 v{vXa}, v{t0}, 10, v{vXa}",
      f"v_lshl_add_u32 v{vXb}, v{t0}, 10, v{vXb}",
      f"s_lshl_b32 s{sT0}, s{sJ}, 16",
      f"s_lshl_b32 s{sT1}, s{sWv}, 14",
      f"s_add_u32 s{sT0}, s{sT0}, s{sT1}",
      f"v_add_u32 v{vXa}, s{sT0}, v{vXa}",
      f"s_add_u32 s{sT0}, s{sT0}, 8192",
      f"v_add_u32 v{vXb}, s{sT0}, v{vXb}")
    a(f"v_and_b32 v{t2}, 1, v{t2}",
      f"v_lshlrev_b32 v{t2}, 2, v{t2}",
      f"v_xor_b32 v{t1}, v{t1}, v{t2}",
      f"v_lshlrev_b32 v{t1}, 4, v{t1}",
      f"v_mul_u32_u24 v{vW}, 3072, v{t0}",
      f"v_add_u32 v{vW}, v{vW}, v{t1}",
      f"s_mul_i32 s{sT0}, s{sWv}, {16*3072}",
      f"s_lshl_b32 s{sT1}, s{sX}, 7",
      f"s_add_u32 s{sT0}, s{sT0}, s{sT1}",
      f"v_add_u32 v{vW}, s{sT0}, v{vW}")
    a("s_waitcnt lgkmcnt(0)")
    srd(a, 12, 4, 0x200000); srd(a, 16, 6, 512 * 3072); srd(a, 20, 8, WS_END)
    a(f"s_mov_b32 s{sXo}, 0", f"s_mov_b32 s{sWo}, 0", f"s_lshl_b32 s{sM}, s{sWv}, 11")
    def issue():
        a(f"s_mov_b32 m0, s{sM}", "s_nop 0",
          f"buffer_load_dwordx4 v{vXa}, s[12:15], s{sXo} offen lds",
          f"s_add_u32 m0, s{sM}, 1024", "s_nop 0",
          f"buffer_load_dwordx4 v{vXb}, s[12:15], s{sXo} offen lds")
        for mat in range(3):
            for par in range(2):
                a(f"s_add_u32 m0, s{sM}, {8192 + mat*8192 + par*1024}",
                  f"s_add_u32 s{sT0}, s{sWo}, {par*24576 + mat*1024}",
                  f"buffer_load_dwordx4 v{vW}, s[16:19], s{sT0} offen lds")
        a(f"s_add_u32 s{sXo}, s{sXo}, 128", f"s_add_u32 s{sWo}, s{sWo}, {64*3072}",
          f"s_add_u32 s{sM}, s{sM}, 32768", f"s_and_b32 s{sM}, s{sM}, 0x1ffff")
    a(f"s_mov_b32 s{sC}, 0")
    a.label("L_k1_pro")
    issue()
    a(f"s_add_u32 s{sC}, s{sC}, 1", f"s_cmp_lt_u32 s{sC}, 4", "s_cbranch_scc1 L_k1_pro")
    a(f"s_and_b32 s{sMt}, s{sWv}, 1", f"s_lshr_b32 s{sG}, s{sWv}, 1")
    a(f"v_and_b32 v{t0}, 31, v{lane}",
      f"v_lshrrev_b32 v{t1}, 5, v{lane}",
      f"v_bfe_u32 v{t2}, v{lane}, 1, 3",
      f"v_xor_b32 v{t1}, v{t1}, v{t2}",
      f"s_lshl_b32 s{sT0}, s{sWv}, 1",
      f"v_xor_b32 v{t1}, s{sT0}, v{t1}",
      f"v_lshlrev_b32 v{t1}, 4, v{t1}",
      f"v_lshl_add_u32 v{t1}, v{t0}, 7, v{t1}",
      f"s_lshl_b32 s{sT0}, s{sMt}, 12",
      f"v_add_u32 v{vXA[0]}, s{sT0}, v{t1}")
    for p in range(1, 4):
        a(f"v_xor_b32 v{vXA[p]}, {p*32}, v{vXA[0]}")
    a(f"v_bfe_u32 v{t0}, v{lane}, 2, 2",
      f"v_lshrrev_b32 v{t1}, 5, v{lane}",
      f"v_lshl_add_u32 v{t0}, v{t1}, 3, v{t0}",
      f"v_lshlrev_b32 v{t0}, 7, v{t0}",
      f"v_and_b32 v{t1}, 3, v{lane}",
      f"v_lshl_add_u32 v{t0}, v{t1}, 3, v{t0}",
      f"v_bfe_u32 v{t1}, v{lane}, 4, 1",
      f"v_lshl_add_u32 v{t0}, v{t1}, 5, v{t0}",
      f"v_bfe_u32 v{t1}, v{lane}, 3, 1",
      f"v_xor_b32 v{t1}, s{sG}, v{t1}",
      f"v_lshl_add_u32 v{t0}, v{t1}, 6, v{t0}",
      f"s_lshl_b32 s{sT0}, s{sWv}, 11",
      f"s_add_u32 s{sT0}, s{sT0}, 8192",
      f"v_add_u32 v{vWA[0]}, s{sT0}, v{t0}")
    for p in range(1, 4):
        a(f"v_xor_b32 v{vWA[p]}, {p*2048}, v{vWA[0]}")
    make_sel(a, vSel, lane, t0, t1)
    for r in list(range(s1, s2h + 1)) + list(range(accQ, accV + 16)):
        a(f"v_mov_b32 v{r}, 0")
    def reads(p, buf):
        a(f"ds_read_b128 {v(xf[buf],4)}, v{vXA[p]}")
        for mat in range(3):
            a(f"ds_read_b64_tr_b16 {v(wf[buf][mat],2)}, v{vWA[p]} offset:{mat*8192}",
              f"ds_read_b64_tr_b16 {v(wf[buf][mat]+2,2)}, v{vWA[p]} offset:{mat*8192+512}")
    a("s_waitcnt vmcnt(24)", "s_barrier")
    reads(0, 0)
    a(f"s_mov_b32 s{sC}, 0")
    a.label("L_k1_loop")
    for p in range(4):
        cur = p & 1; nxt = cur ^ 1
        if p < 3:
            reads(p + 1, nxt)
            a("s_waitcnt lgkmcnt(7)")
        else:
            a(f"s_cmp_lt_u32 s{sC}, 5", "s_cbranch_scc1 L_k1_w16",
              f"s_cmp_lt_u32 s{sC}, 6", "s_cbranch_scc1 L_k1_w8",
              "s_waitcnt vmcnt(0)")
            a.label("L_k1_w8"); a("s_waitcnt vmcnt(8)")
            a.label("L_k1_w16"); a("s_waitcnt vmcnt(16)")
            a(f"s_add_u32 s{sT0}, s{sC}, 1", f"s_xor_b32 s{sT0}, s{sT0}, s{sC}",
              f"s_and_b32 s{sT0}, s{sT0}, 3", f"s_lshl_b32 s{sSlot}, s{sT0}, 15")
            for r in vXA + vWA:
                a(f"v_xor_b32 v{r}, s{sSlot}, v{r}")
            a("s_waitcnt lgkmcnt(0)", "s_barrier")
            reads(0, nxt)
        extra = []
        if p in (1, 2):
            x0 = xf[cur]
            for i in range(4):
                extra += [f"v_lshlrev_b32 v{tmp+2*i}, 16, v{x0+i}", f"v_and_b32 v{tmp+2*i+1}, 0xffff0000, v{x0+i}"]
            for i in range(4):
                extra += [f"v_fmac_f32 v{s2l}, v{tmp+2*i}, v{tmp+2*i}", f"v_fmac_f32 v{s2h}, v{tmp+2*i+1}, v{tmp+2*i+1}"]
        ms = [mfma32(accQ, wf[cur][0], xf[cur]), mfma32(accK, wf[cur][1], xf[cur]), mfma32(accV, xf[cur], wf[cur][2])]
        if p in (1, 2):
            a(ms[0], *extra[0:5]); a(ms[1], *extra[5:10]); a(ms[2], *extra[10:16]); a(mfma16(s1, vSel, xf[cur]))
        else:
            a(ms[0], ms[1])
            if p == 3:
                a(f"s_cmp_ge_u32 s{sC}, 4", "s_cbranch_scc1 L_k1_noissue")
                issue()
                a.label("L_k1_noissue")
            a(ms[2])
            for mat in range(3):
                a(mfma16(cacc[mat], vSel, wf[cur][mat]))
    a(f"s_add_u32 s{sC}, s{sC}, 1", f"s_cmp_lt_u32 s{sC}, 8", "s_cbranch_scc1 L_k1_loop")
    E_S1, E_S2, E_C, E_R = 0, 512, 1536, 3072
    e = 128
    vm, vhh, va = 8, 9, 10
    a(f"v_add_f32 v{s2l}, v{s2l}, v{s2h}",
      f"v_and_b32 v{vm}, 31, v{lane}", f"v_lshrrev_b32 v{vhh}, 5, v{lane}",
      f"s_lshl_b32 s{sT0}, s{sWv}, 8",
      f"s_add_u32 s{sT0}, s{sT0}, {E_S2}",
      f"v_lshl_add_u32 v{va}, v{lane}, 2, s{sT0}",
      "s_waitcnt lgkmcnt(0)",
      f"ds_write_b32 v{va}, v{s2l}",
      f"s_lshl_b32 s{sT0}, s{sWv}, 7",
      f"v_lshl_add_u32 v{va}, v{lane}, 2, s{sT0}",
      f"s_lshl_b32 s{sT0}, s{sMt}, 1", f"s_add_u32 s{sT0}, s{sT0}, s{sG}", f"s_mul_i32 s{sT0}, s{sT0}, 384",
      f"s_add_u32 s{sT0}, s{sT0}, {E_C}",
      f"v_lshl_add_u32 v{va+1}, v{lane}, 2, s{sT0}",
      "s_nop 4",
      "s_mov_b64 exec, 0xffff",
      f"ds_write2_b32 v{va}, v{s1}, v{s1+1} offset0:0 offset1:16")
    for t in range(3):
        a(f"ds_write2_b32 v{va+1}, v{cacc[t]}, v{cacc[t]+1} offset0:{t*32} offset1:{t*32+16}")
    a("s_mov_b64 exec, -1", "s_waitcnt lgkmcnt(0)", "s_barrier")
    a(f"s_lshl_b32 s{sT0}, s{sMt}, 7",
      f"v_lshl_add_u32 v{va}, v{vm}, 2, s{sT0}",
      f"ds_read2_b32 {v(20,2)}, v{va} offset0:0 offset1:64",
      f"s_lshl_b32 s{sT0}, s{sMt}, 8", f"s_add_u32 s{sT0}, s{sT0}, {E_S2}",
      f"v_lshl_add_u32 v{va}, v{vm}, 2, s{sT0}",
      f"ds_read2_b32 {v(22,2)}, v{va} offset0:0 offset1:32",
      f"ds_read2_b32 {v(24,2)}, v{va} offset0:128 offset1:160",
      f"s_mul_i32 s{sT0}, s{sG}, 384", f"s_add_u32 s{sT0}, s{sT0}, {E_C}",
      f"v_lshl_add_u32 v{va}, v{vm}, 2, s{sT0}")
    a(f"ds_read_b32 v26, v{va} offset:256", f"ds_read_b32 v27, v{va} offset:{256+768}")
    a(f"v_lshl_add_u32 v{va+1}, v{vhh}, 4, s{sT0}")
    for t in range(2):
        for mtp in range(2):
            for gg in range(4):
                a(f"ds_read_b128 {v(e + (t*2+mtp)*16 + gg*4, 4)}, v{va+1} offset:{mtp*768 + t*128 + gg*32}")
    mu, rr, mur, rq, cv = 28, 30, 32, 34, 36
    a("s_waitcnt lgkmcnt(15)")
    a(f"v_add_f32 v20, v20, v21", "v_add_f32 v22, v22, v23", "v_add_f32 v24, v24, v25",
      f"v_add_f32 v{cv}, v26, v27",
      f"s_mov_b32 s{sT1}, 0x3b000000",
      f"v_mul_f32 v{mu}, s{sT1}, v20",
      "v_add_f32 v22, v22, v24",
      f"v_mul_f32 v22, s{sT1}, v22",
      f"v_fma_f32 v22, -v{mu}, v{mu}, v22",
      "v_max_f32 v22, 0, v22",
      "v_add_f32 v22, 0x3727c5ac, v22",
      f"v_rsq_f32 v{rr}, v22",
      "s_nop 0",
      f"v_mul_f32 v{mur}, v{mu}, v{rr}")
    qs = 0.25 * math.log2(math.e)
    import struct
    qsb = struct.unpack("<I", struct.pack("<f", qs))[0]
    a(f"v_mul_f32 v{rq}, {qsb:#x}, v{rr}",
      f"s_lshl_b32 s{sT0}, s{sWv}, 8", f"s_add_u32 s{sT0}, s{sT0}, {E_R}",
      f"v_lshl_add_u32 v{va}, v{vm}, 2, s{sT0}",
      f"ds_write2_b32 v{va}, v{rr}, v{mur} offset0:0 offset1:32",
      f"v_lshl_add_u32 v{va}, v{vhh}, 4, s{sT0}",
      "s_waitcnt lgkmcnt(0)")
    rreg, murreg = 40, 56
    for gg in range(4):
        a(f"ds_read_b128 {v(rreg+gg*4,4)}, v{va} offset:{gg*32}", f"ds_read_b128 {v(murreg+gg*4,4)}, v{va} offset:{128+gg*32}")
    vq, vk, vv = 11, 12, 13
    a(f"s_lshl_b32 s{sT0}, s{sX}, 2", f"s_lshl_b32 s{sT1}, s{sG}, 1", f"s_add_u32 s{sT0}, s{sT0}, s{sT1}",
      f"s_lshl_b32 s{sT0}, s{sT0}, 16",
      f"s_lshl_b32 s{sT1}, s{sJ}, 1", f"s_add_u32 s{sT1}, s{sT1}, s{sMt}", f"s_lshl_b32 s{sT1}, s{sT1}, 10",
      f"s_add_u32 s{sT0}, s{sT0}, s{sT1}",
      f"v_lshl_add_u32 v{vq}, v{lane}, 4, s{sT0}",
      f"v_and_b32 v{t0}, 0x33, v{lane}",
      f"v_bfe_u32 v{t1}, v{lane}, 2, 1", f"v_lshl_or_b32 v{t0}, v{t1}, 3, v{t0}",
      f"v_bfe_u32 v{t1}, v{lane}, 3, 1", f"v_lshl_or_b32 v{t0}, v{t1}, 2, v{t0}",
      f"v_lshl_add_u32 v{vk}, v{t0}, 4, s{sT0}",
      f"v_and_b32 v{t0}, 15, v{lane}", f"v_lshlrev_b32 v{t0}, 4, v{t0}",
      f"v_lshl_add_u32 v{t0}, v{vhh}, 8, v{t0}",
      f"v_bfe_u32 v{t1}, v{lane}, 4, 1", f"v_lshl_add_u32 v{t0}, v{t1}, 16, v{t0}",
      f"v_add_u32 v{vv}, s{sT0}, v{t0}")
    sQ1, sK0, sK1, sV = 36, 37, 38, 39
    a(f"s_mov_b32 s{sQ1}, {QF + 65536:#x}", f"s_mov_b32 s{sK0}, {KF:#x}", f"s_mov_b32 s{sK1}, {KF + 65536:#x}", f"s_mov_b32 s{sV}, {VF:#x}")
    for t, (acc, sc) in enumerate(((accQ, rq), (accK, rr))):
        c0 = e + t * 32
        for i in range(0, 16, 2):
            a(f"v_pk_add_f32 {v(c0+i,2)}, {v(c0+i,2)}, {v(c0+16+i,2)}")
        for i in range(0, 16, 2):
            a(f"v_pk_fma_f32 {v(acc+i,2)}, {v(c0+i,2)}, {v(mu,2)}, {v(acc+i,2)} op_sel_hi:[1,0,1] neg_lo:[0,1,0] neg_hi:[0,1,0]")
        for i in range(0, 16, 2):
            a(f"v_pk_mul_f32 {v(acc+i,2)}, {v(acc+i,2)}, {v(sc,2)} op_sel_hi:[1,0]")
        for i in range(8):
            a(f"v_cvt_pk_bf16_f32 v{c0+i}, v{acc+2*i}, v{acc+2*i+1}")
        if t == 0:
            assert QF == 0
            a(f"buffer_store_dwordx4 {v(c0,4)}, v{vq}, s[20:23], 0 offen", f"buffer_store_dwordx4 {v(c0+4,4)}, v{vq}, s[20:23], s{sQ1} offen")
        else:
            a(f"buffer_store_dwordx4 {v(c0,4)}, v{vk}, s[20:23], s{sK0} offen", f"buffer_store_dwordx4 {v(c0+4,4)}, v{vk}, s[20:23], s{sK1} offen")
    a("s_waitcnt lgkmcnt(0)")
    for i in range(0, 16, 2):
        a(f"v_pk_mul_f32 {v(accV+i,2)}, {v(accV+i,2)}, {v(rreg+i,2)}")
    for i in range(0, 16, 2):
        a(f"v_pk_fma_f32 {v(accV+i,2)}, {v(murreg+i,2)}, {v(cv,2)}, {v(accV+i,2)} op_sel_hi:[1,0,1] neg_lo:[0,1,0] neg_hi:[0,1,0]")
    for i in range(8):
        a(f"v_cvt_pk_bf16_f32 v{72+i}, v{accV+2*i}, v{accV+2*i+1}")
    a(f"buffer_store_dwordx4 {v(72,4)}, v{vv}, s[20:23], s{sV} offen", f"buffer_store_dwordx4 {v(76,4)}, v{vv}, s[20:23], s{sV} offen offset:512")
    a.label(done)
    a("s_endpgm")
    return dict(name=NAME, grid=256, block=256, lds=LDS, vgpr=192)
```

```python
from common import *
NAME = "attn_kernel"
ONES = 131072
LDS = 131072 + 16384
def gen(a):
    kernel_head(a, NAME)
    done = "L_k2_done"
    a("s_cmp_ge_u32 s2, 256", f"s_cbranch_scc1 {done}")
    a(f"s_load_dwordx2 s[8:9], s[0:1], {KA_WS}")
    sHead, sQb, sWv, sC, sT0, sT1, sKo, sVo, sM, sTile = 24, 25, 26, 27, 28, 29, 30, 31, 32, 33
    lane, vKA, vVA, vInc, vG, vIdx, t0, t1 = 1, 2, 3, 8, 9, 10, 11, 84
    Q = 4
    Kb = [12, 16]; Vb = [[20, 24], [28, 32]]
    S = [36, 52]; O = 68
    a(f"s_and_b32 s{sT0}, s2, 7", f"s_lshr_b32 s{sT1}, s2, 3",
      f"s_lshl_b32 s{sT0}, s{sT0}, 2", f"s_and_b32 s{sHead}, s{sT1}, 3", f"s_add_u32 s{sHead}, s{sHead}, s{sT0}",
      f"s_lshr_b32 s{sQb}, s{sT1}, 2")
    a(f"v_lshrrev_b32 v{t0}, 6, v0", f"v_and_b32 v{lane}, 63, v0", f"v_readfirstlane_b32 s{sWv}, v{t0}",
      f"v_lshlrev_b32 v{vG}, 4, v{lane}")
    a(f"s_lshl_b32 s{sTile}, s{sQb}, 3", f"s_add_u32 s{sTile}, s{sTile}, s{sWv}",
      f"s_lshl_b32 s{sT0}, s{sHead}, 16",
      f"s_lshl_b32 s{sM}, s{sWv}, 10",
      f"s_add_u32 s{sKo}, s{sT0}, s{sM}",
      f"s_add_u32 s{sVo}, s{sKo}, {VF:#x}",
      f"s_add_u32 s{sKo}, s{sKo}, {KF:#x}",
      f"s_lshl_b32 s{sT1}, s{sTile}, 10", f"s_add_u32 s{sT0}, s{sT0}, s{sT1}")
    a("s_waitcnt lgkmcnt(0)")
    srd(a, 20, 8, WS_END)
    a(f"buffer_load_dwordx4 {v(Q,4)}, v{vG}, s[20:23], s{sT0} offen")
    def issue():
        a(f"s_mov_b32 m0, s{sM}", "s_nop 0",
          f"buffer_load_dwordx4 v{vG}, s[20:23], s{sKo} offen lds",
          f"s_add_u32 m0, s{sM}, 65536", f"s_add_u32 s{sKo}, s{sKo}, 8192",
          f"buffer_load_dwordx4 v{vG}, s[20:23], s{sVo} offen lds",
          f"s_add_u32 s{sVo}, s{sVo}, 8192", f"s_add_u32 s{sM}, s{sM}, 8192")
    for i in range(3):
        issue()
    a(f"v_mov_b32 v{S[0]}, 0x3f803f80", f"v_mov_b32 v{S[0]+1}, v{S[0]}", f"v_mov_b32 v{S[0]+2}, v{S[0]}", f"v_mov_b32 v{S[0]+3}, v{S[0]}",
      f"s_lshl_b32 s{sT0}, s{sWv}, 11", f"s_add_u32 s{sT0}, s{sT0}, {ONES}",
      f"v_add_u32 v{t0}, s{sT0}, v{vG}",
      f"ds_write_b128 v{t0}, {v(S[0],4)}", f"ds_write_b128 v{t0}, {v(S[0],4)} offset:1024")
    a(f"v_mov_b32 v{vKA}, v{vG}",
      f"v_and_b32 v{t0}, 15, v{lane}", f"v_lshlrev_b32 v{t0}, 4, v{t0}",
      f"v_lshrrev_b32 v{t1}, 5, v{lane}", f"v_lshl_add_u32 v{t0}, v{t1}, 8, v{t0}",
      f"v_and_b32 v{t1}, 16, v{lane}", f"v_cmp_eq_u32 vcc, 0, v{t1}",
      f"v_lshlrev_b32 v{t1}, 12, v{t1}",
      f"v_add_u32 v{t0}, v{t0}, v{t1}",
      f"v_add_u32 v{vVA}, 0x10000, v{t0}",
      f"v_mov_b32 v{t1}, 0x2000",
      f"v_cndmask_b32 v{vInc}, 0, v{t1}, vcc",
      f"v_mov_b32 v{vIdx}, 0xdddd")
    for r in range(16):
        a(f"v_mov_b32 v{O+r}, 0")
    a("s_waitcnt vmcnt(4) lgkmcnt(0)", "s_barrier")
    a(f"ds_read_b128 {v(Kb[0],4)}, v{vKA}", f"ds_read_b128 {v(Kb[1],4)}, v{vKA} offset:1024",
      f"ds_read_b128 {v(Vb[0][0],4)}, v{vVA}", f"ds_read_b128 {v(Vb[0][1],4)}, v{vVA} offset:512",
      "s_waitcnt lgkmcnt(3)", mfma32(S[0], Kb[0], Q, "0"),
      "s_waitcnt lgkmcnt(2)", mfma32(S[1], Kb[1], Q, "0"),
      f"s_mov_b32 s{sC}, 0", "s_nop 9",
      f"v_exp_f32 v{S[0]}, v{S[0]}", f"v_exp_f32 v{S[0]+1}, v{S[0]+1}")
    a.raw(".p2align 6")
    a.label("L_k2_loop")
    E = lambda r: f"v_exp_f32 v{r}, v{r}"
    for tt in range(8):
        c = tt & 1; n = c ^ 1
        if tt == 6:
            a(f"s_cmp_lt_u32 s{sC}, 6", "s_cbranch_scc1 L_k2_w2", "s_waitcnt vmcnt(0)")
            a.label("L_k2_w2")
            a("s_waitcnt vmcnt(2)", "s_barrier")
        a(f"ds_read_b128 {v(Kb[c],4)}, v{vKA} offset:{(tt+2)*1024}",
          f"ds_read_b128 {v(Vb[n][0],4)}, v{vVA} offset:{(tt+1)*1024}",
          f"ds_read_b128 {v(Vb[n][1],4)}, v{vVA} offset:{(tt+1)*1024+512}")
        if tt == 6:
            a(f"s_cmp_ge_u32 s{sC}, 5", "s_cbranch_scc1 L_k2_noissue")
            issue()
            a.label("L_k2_noissue")
        for r in range(2, 10): a(E(S[c] + r))
        a("s_waitcnt lgkmcnt(3)",
          f"v_smfmac_f32_32x32x32_bf16 {v(O,16)}, {v(Vb[c][0],4)}, {v(S[c],8)}, v{vIdx}")
        for r in range(10, 16): a(E(S[c] + r))
        a(E(S[n]), E(S[n] + 1))
        a(f"v_smfmac_f32_32x32x32_bf16 {v(O,16)}, {v(Vb[c][1],4)}, {v(S[c]+8,8)}, v{vIdx}")
        if tt == 7:
            a(f"v_add_u32 v{vVA}, v{vInc}, v{vVA}", f"v_add_u32 v{vKA}, 0x2000, v{vKA}",
              f"s_add_u32 s{sC}, s{sC}, 1", f"s_cmp_lt_u32 s{sC}, 8")
        a("s_waitcnt lgkmcnt(2)", mfma32(S[c], Kb[c], Q, "0"))
    a("s_cbranch_scc1 L_k2_loop")
    l = O + 8; ri = 85
    a("s_waitcnt lgkmcnt(0)", "s_nop 15")
    a.label("L_k2_fin")
    a(f"v_rcp_f32 v{ri}, v{l}", f"s_mov_b32 s{sT0}, 0x21800000", f"s_mov_b32 s{sT1}, 0x5d800000",
      f"v_cmp_le_f32 s[40:41], s{sT0}, v{l}", f"v_cmp_ge_f32 s[42:43], s{sT1}, v{l}",
      f"v_mov_b32 v{t0}, 0")
    for r in range(8):
        a(f"v_mul_f32 v{O+r}, v{O+r}, v{ri}")
    for r in range(8):
        a(f"v_fmac_f32 v{t0}, 0, v{O+r}")
    a("s_and_b64 s[40:41], s[40:41], s[42:43]", f"v_cmp_o_f32 vcc, v{t0}, v{t0}")
    for r in range(4):
        a(f"v_cvt_pk_bf16_f32 v{S[0]+r}, v{O+2*r}, v{O+2*r+1}")
    a("s_and_b64 s[40:41], s[40:41], vcc", "s_cmp_eq_u64 s[40:41], exec", "s_cbranch_scc1 L_k2_store",
      f"s_cmp_eq_u32 s{sC}, 8", "s_cbranch_scc1 L_k2_slow")
    a.label("L_k2_store")
    a(f"s_lshl_b32 s{sT0}, s{sTile}, 5", f"s_add_u32 s{sT0}, s{sT0}, s{sHead}", f"s_lshl_b32 s{sT0}, s{sT0}, 10",
      f"s_add_u32 s{sT0}, s{sT0}, {OF:#x}",
      f"buffer_store_dwordx4 {v(S[0],4)}, v{vG}, s[20:23], s{sT0} offen")
    a.label(done)
    a("s_endpgm")
    a.label("L_k2_slow")
    m, mn, al = 86, 87, 88
    a(f"v_mov_b32 v{vKA}, v{vG}", f"v_lshlrev_b32 v{t0}, 3, v{vInc}", f"v_sub_u32 v{vVA}, v{vVA}, v{t0}",
      f"v_lshrrev_b32 v{vInc}, 3, v{vInc}", f"v_mov_b32 v{m}, 0xff800000", f"s_mov_b32 s{sC}, 9")
    for r in range(16):
        a(f"v_mov_b32 v{O+r}, 0")
    a(f"s_mov_b32 s{sT1}, 0")
    a.label("L_k2_sloop")
    a(f"ds_read_b128 {v(Kb[0],4)}, v{vKA}", f"ds_read_b128 {v(Vb[0][0],4)}, v{vVA}", f"ds_read_b128 {v(Vb[0][1],4)}, v{vVA} offset:512",
      "s_waitcnt lgkmcnt(0)", mfma32(S[0], Kb[0], Q, "0"),
      f"v_add_u32 v{vKA}, 0x400, v{vKA}", f"v_add_u32 v{vVA}, v{vInc}, v{vVA}", "s_nop 15")
    a(f"v_max3_f32 v{mn}, v{S[0]}, v{S[0]+1}, v{m}")
    for r in range(2, 16, 2):
        a(f"v_max3_f32 v{mn}, v{S[0]+r}, v{S[0]+r+1}, v{mn}")
    a(f"v_mov_b32 v{t0}, v{mn}", "s_nop 1", f"v_permlane32_swap_b32 v{t0}, v{mn}", "s_nop 1",
      f"v_max_f32 v{mn}, v{t0}, v{mn}",
      f"v_sub_f32 v{al}, v{m}, v{mn}", f"v_exp_f32 v{al}, v{al}", f"v_mov_b32 v{m}, v{mn}")
    for r in range(16):
        a(f"v_sub_f32 v{S[0]+r}, v{S[0]+r}, v{mn}")
    for r in range(16):
        a(E(S[0] + r))
    for r in range(16):
        a(f"v_mul_f32 v{O+r}, v{O+r}, v{al}")
    a("s_nop 1",
      f"v_smfmac_f32_32x32x32_bf16 {v(O,16)}, {v(Vb[0][0],4)}, {v(S[0],8)}, v{vIdx}",
      f"v_smfmac_f32_32x32x32_bf16 {v(O,16)}, {v(Vb[0][1],4)}, {v(S[0]+8,8)}, v{vIdx}",
      f"s_add_u32 s{sT1}, s{sT1}, 1", f"s_cmp_lt_u32 s{sT1}, 64", "s_nop 15", "s_cbranch_scc1 L_k2_sloop",
      "s_branch L_k2_fin")
    return dict(name=NAME, grid=256, block=512, lds=LDS, vgpr=96)
```

```python
from common import *
def gen(a, which):
    wo = which == "wo"
    NAME = "wo_kernel" if wo else "down_kernel"
    P = "k3" if wo else "k5"
    NK = 32 if wo else 86
    NS = (NK + 3) // 4
    D = 8 if wo else 11
    ACT = OF if wo else GF
    RING = D * 2048
    RED = 4 * RING
    XIM = RED + 49152
    LDS = XIM + (8192 if wo else 0)
    kernel_head(a, NAME)
    done = f"L_{P}_done"
    a("s_cmp_ge_u32 s2, 256", f"s_cbranch_scc1 {done}")
    a(f"s_load_dwordx2 s[4:5], s[0:1], {KA_WO if wo else KA_WD}",
      f"s_load_dwordx2 s[6:7], s[0:1], {KA_X if wo else KA_OUT}",
      f"s_load_dwordx2 s[8:9], s[0:1], {KA_WS}")
    sMb, sNs, sWv, sT0, sT1, sA, sW, sM, sMt, sNt, sAl = 24, 25, 26, 28, 29, 30, 31, 32, 33, 34, 35
    lane, t0, t1, t2 = 1, 5, 6, 7
    vAc = [2, 3]; vW = [4, 8]; vR = [9, 10]; vG = 11
    wf = [[12, 16], [20, 24]]
    res = 28
    acc = [36, 52, 68, 84]
    act = 100
    a(f"s_and_b32 s{sT0}, s2, 7", f"s_lshr_b32 s{sT1}, s2, 3",
      f"s_lshl_b32 s{sMb}, s{sT0}, 2", f"s_lshr_b32 s{sT0}, s{sT1}, 3", f"s_add_u32 s{sMb}, s{sMb}, s{sT0}",
      f"s_and_b32 s{sNs}, s{sT1}, 7")
    a(f"v_lshrrev_b32 v{t0}, 6, v0", f"v_and_b32 v{lane}, 63, v0", f"v_readfirstlane_b32 s{sWv}, v{t0}",
      f"v_lshlrev_b32 v{vG}, 4, v{lane}")
    a(f"s_and_b32 s{sMt}, s{sWv}, 1", f"s_lshr_b32 s{sNt}, s{sWv}, 1")
    a(f"s_lshl_b32 s{sT0}, s{sMb}, 1", f"s_add_u32 s{sT0}, s{sT0}, s{sMt}",
      f"s_mul_i32 s{sT1}, s{sT0}, {NK*1024}", f"s_add_u32 s{sT1}, s{sT1}, {ACT:#x}",
      f"v_add_u32 v{vAc[0]}, s{sT1}, v{vG}",
      f"s_xor_b32 s{sT0}, s{sT0}, 1",
      f"s_mul_i32 s{sT1}, s{sT0}, {NK*1024}", f"s_add_u32 s{sT1}, s{sT1}, {ACT:#x}",
      f"v_add_u32 v{vAc[1]}, s{sT1}, v{vG}")
    a(f"v_lshrrev_b32 v{t0}, 3, v{lane}", f"v_and_b32 v{t1}, 7, v{lane}", f"v_bfe_u32 v{t2}, v{lane}, 4, 1",
      f"v_lshlrev_b32 v{t2}, 2, v{t2}", f"v_xor_b32 v{t2}, v{t1}, v{t2}", f"v_lshlrev_b32 v{t2}, 4, v{t2}",
      f"v_lshl_add_u32 v{t2}, v{t0}, 10, v{t2}",
      f"s_lshl_b32 s{sT0}, s{sNs}, 7",
      f"v_add_u32 v{vW[0]}, s{sT0}, v{t2}", f"v_add_u32 v{vW[1]}, 0x2000, v{vW[0]}")
    a(f"s_lshl_b32 s{sA}, s{sWv}, 10", f"s_lshl_b32 s{sW}, s{sWv}, 14", f"s_mul_i32 s{sM}, s{sWv}, {RING}")
    if wo:
        vXa, vXb = res, res + 1
        a(f"v_lshrrev_b32 v{t2}, 4, v{lane}", f"v_xor_b32 v{vXa}, v{t1}, v{t2}", f"v_xor_b32 v{vXb}, 4, v{vXa}",
          f"v_lshlrev_b32 v{vXa}, 4, v{vXa}", f"v_lshlrev_b32 v{vXb}, 4, v{vXb}",
          f"v_lshl_add_u32 v{vXa}, v{t0}, 10, v{vXa}", f"v_lshl_add_u32 v{vXb}, v{t0}, 10, v{vXb}",
          f"s_lshl_b32 s{sT0}, s{sMb}, 16", f"s_lshl_b32 s{sT1}, s{sWv}, 14", f"s_add_u32 s{sT0}, s{sT0}, s{sT1}",
          f"s_lshl_b32 s{sT1}, s{sNs}, 7", f"s_add_u32 s{sT0}, s{sT0}, s{sT1}",
          f"v_add_u32 v{vXa}, s{sT0}, v{vXa}", f"s_add_u32 s{sT0}, s{sT0}, 8192", f"v_add_u32 v{vXb}, s{sT0}, v{vXb}")
    a("s_waitcnt lgkmcnt(0)")
    srd(a, 12, 4, NK * 16 * 1024); srd(a, 16, 6, 0x200000); srd(a, 20, 8, WS_END)
    q = []
    def issue(i):
        slot = i % D
        sa = sA
        if not wo and i == NS - 1:
            a(f"s_cmp_lt_u32 s{sWv}, 2", f"s_cselect_b32 s{sAl}, s{sA}, 0x40000000")
            sa = sAl
        a(f"s_add_u32 m0, s{sM}, {slot*2048}",
          f"buffer_load_dwordx4 {v(act+slot*8,4)}, v{vAc[0]}, s[20:23], s{sa} offen",
          f"buffer_load_dwordx4 v{vW[0]}, s[12:15], s{sW} offen lds",
          f"s_add_u32 m0, s{sM}, {slot*2048+1024}",
          f"buffer_load_dwordx4 {v(act+slot*8+4,4)}, v{vAc[1]}, s[20:23], s{sa} offen",
          f"buffer_load_dwordx4 v{vW[1]}, s[12:15], s{sW} offen lds",
          f"s_add_u32 s{sA}, s{sA}, 4096", f"s_add_u32 s{sW}, s{sW}, 65536")
        q.extend([i] * 4)
    def waitfor(i):
        n = len(q) - (max(k for k, t in enumerate(q) if t == i) + 1)
        a(f"s_waitcnt vmcnt({n})")
    issue(0); issue(1)
    if wo:
        a(f"s_lshl_b32 s{sT0}, s{sWv}, 11", f"s_add_u32 m0, s{sT0}, {XIM}", "s_nop 0",
          f"buffer_load_dwordx4 v{vXa}, s[16:19], 0 offen lds",
          f"s_add_u32 m0, s{sT0}, {XIM+1024}", "s_nop 0",
          f"buffer_load_dwordx4 v{vXb}, s[16:19], 0 offen lds")
    else:
        a(f"s_lshl_b32 s{sT0}, s{sMb}, 1", f"s_add_u32 s{sT0}, s{sT0}, s{sMt}", f"s_lshl_b32 s{sT0}, s{sT0}, 5",
          f"s_lshl_b32 s{sT1}, s{sNs}, 2", f"s_add_u32 s{sT0}, s{sT0}, s{sT1}",
          f"s_lshl_b32 s{sT1}, s{sNt}, 1", f"s_add_u32 s{sT0}, s{sT0}, s{sT1}",
          f"s_lshl_b32 s{sT0}, s{sT0}, 10", f"s_add_u32 s{sT0}, s{sT0}, {HF:#x}",
          f"buffer_load_dwordx4 {v(res,4)}, v{vG}, s[20:23], s{sT0} offen",
          f"buffer_load_dwordx4 {v(res+4,4)}, v{vG}, s[20:23], s{sT0} offen offset:1024")
    q.extend([-1, -1])
    for i in range(2, min(D, NS)):
        issue(i)
    a(f"v_bfe_u32 v{t0}, v{lane}, 2, 2", f"v_lshrrev_b32 v{t1}, 5, v{lane}", f"v_lshl_add_u32 v{t0}, v{t1}, 2, v{t0}",
      f"v_lshlrev_b32 v{t0}, 7, v{t0}", f"v_and_b32 v{t1}, 3, v{lane}", f"v_lshl_add_u32 v{t0}, v{t1}, 3, v{t0}",
      f"v_bfe_u32 v{t1}, v{lane}, 4, 1", f"v_lshl_add_u32 v{t0}, v{t1}, 5, v{t0}",
      f"v_bfe_u32 v{t1}, v{lane}, 3, 1", f"v_xor_b32 v{t1}, s{sNt}, v{t1}", f"v_lshl_add_u32 v{t0}, v{t1}, 6, v{t0}",
      f"v_add_u32 v{vR[0]}, s{sM}, v{t0}", f"v_xor_b32 v{vR[1]}, 64, v{vR[0]}")
    def reads(i):
        slot = i % D; b = i & 1
        for n in range(2):
            a(f"ds_read_b64_tr_b16 {v(wf[b][n],2)}, v{vR[n]} offset:{slot*2048}",
              f"ds_read_b64_tr_b16 {v(wf[b][n]+2,2)}, v{vR[n]} offset:{slot*2048+1024}")
    waitfor(0)
    reads(0)
    for i in range(NS):
        slot = i % D; b = i & 1
        if i + 1 < NS:
            waitfor(i + 1)
            reads(i + 1)
            a("s_waitcnt lgkmcnt(4)")
        else:
            a("s_waitcnt lgkmcnt(0)")
        for n in range(2):
            for m in range(2):
                a(mfma32(acc[m + 2 * n], wf[b][n], act + slot * 8 + 4 * m, "0" if i == 0 else None))
        if i + D < NS:
            issue(i + D)
    a(f"s_waitcnt vmcnt(0)", "s_nop 7")
    for p in range(1, 4):
        a(f"s_xor_b32 s{sT0}, s{sWv}, {p}", f"s_mul_i32 s{sT0}, s{sT0}, 12288", f"s_add_u32 s{sT0}, s{sT0}, {RED + (p-1)*4096}",
          f"v_add_u32 v{t0+p-1}, s{sT0}, v{vG}")
    for p in range(1, 4):
        for k in range(4):
            a(f"ds_write_b128 v{t0+p-1}, {v(acc[p]+4*k,4)} offset:{k*1024}")
    a(f"s_mul_i32 s{sT0}, s{sWv}, 12288", f"s_add_u32 s{sT0}, s{sT0}, {RED}", f"v_add_u32 v{t0}, s{sT0}, v{vG}",
      "s_waitcnt lgkmcnt(0)", "s_barrier")
    for p in range(1, 4):
        for k in range(4):
            a(f"ds_read_b128 {v(acc[p]+4*k,4)}, v{t0} offset:{(p-1)*4096 + k*1024}")
    A0 = acc[0]
    if wo:
        xr = 12
        a(f"v_bfe_u32 v{t1}, v{lane}, 1, 3", f"s_lshl_b32 s{sT0}, s{sNt}, 2", f"v_xor_b32 v{t1}, s{sT0}, v{t1}",
          f"v_lshlrev_b32 v{t1}, 4, v{t1}", f"v_and_b32 v{t2}, 31, v{lane}", f"v_lshl_add_u32 v{t1}, v{t2}, 7, v{t1}",
          f"v_lshrrev_b32 v{t2}, 5, v{lane}", f"v_lshl_add_u32 v{t1}, v{t2}, 3, v{t1}",
          f"s_lshl_b32 s{sT0}, s{sMt}, 12", f"s_add_u32 s{sT0}, s{sT0}, {XIM}", f"v_add_u32 v{t1}, s{sT0}, v{t1}")
        a("s_waitcnt lgkmcnt(8)")
        for gg in range(4):
            if gg: a(f"v_xor_b32 v{t2}, {gg*16}, v{t1}")
            a(f"ds_read_b64 {v(xr+2*gg,2)}, v{t2 if gg else t1}")
        a("s_waitcnt lgkmcnt(4)")
        rsrc = xr
    else:
        a("s_waitcnt lgkmcnt(0)")
        rsrc = res
    for i in range(0, 16, 2):
        a(f"v_pk_add_f32 {v(acc[1]+i,2)}, {v(acc[1]+i,2)}, {v(acc[2]+i,2)}")
    for i in range(0, 16, 2):
        a(f"v_pk_add_f32 {v(A0+i,2)}, {v(A0+i,2)}, {v(acc[3]+i,2)}")
    for i in range(0, 16, 2):
        a(f"v_pk_add_f32 {v(A0+i,2)}, {v(A0+i,2)}, {v(acc[1]+i,2)}")
    if wo: a("s_waitcnt lgkmcnt(0)")
    u = acc[2]
    for i in range(8):
        a(f"v_lshlrev_b32 v{u+2*i}, 16, v{rsrc+i}", f"v_and_b32 v{u+2*i+1}, 0xffff0000, v{rsrc+i}")
    for i in range(0, 16, 2):
        a(f"v_pk_add_f32 {v(A0+i,2)}, {v(A0+i,2)}, {v(u+i,2)}")
    pk = acc[3]
    for i in range(8):
        a(f"v_cvt_pk_bf16_f32 v{pk+i}, v{A0+2*i}, v{A0+2*i+1}")
    if wo:
        a(f"s_lshl_b32 s{sT0}, s{sMb}, 1", f"s_add_u32 s{sT0}, s{sT0}, s{sMt}",
          f"s_lshl_b32 s{sA}, s{sT0}, 4",
          f"s_lshl_b32 s{sT0}, s{sT0}, 5",
          f"s_lshl_b32 s{sT1}, s{sNs}, 1", f"s_add_u32 s{sT1}, s{sT1}, s{sNt}",
          f"s_add_u32 s{sA}, s{sA}, s{sT1}", f"s_lshl_b32 s{sA}, s{sA}, 8", f"s_add_u32 s{sA}, s{sA}, {ST:#x}",
          f"s_lshl_b32 s{sT1}, s{sT1}, 1", f"s_add_u32 s{sT0}, s{sT0}, s{sT1}",
          f"s_lshl_b32 s{sT0}, s{sT0}, 10", f"s_add_u32 s{sT0}, s{sT0}, {HF:#x}",
          f"buffer_store_dwordx4 {v(pk,4)}, v{vG}, s[20:23], s{sT0} offen",
          f"buffer_store_dwordx4 {v(pk+4,4)}, v{vG}, s[20:23], s{sT0} offen offset:1024")
        s1, s2, one = 12, 13, 14
        a(f"v_mov_b32 v{s1}, 0", f"v_mov_b32 v{s2}, 0", f"v_mov_b32 v{one}, 0x3f803f80")
        for i in range(8):
            a(f"v_dot2c_f32_bf16 v{s1}, v{pk+i}, v{one}", f"v_dot2c_f32_bf16 v{s2}, v{pk+i}, v{pk+i}")
        a("s_nop 3", f"v_permlane32_swap_b32 v{s1}, v{s2}", "s_nop 1", f"v_add_f32 v{s1}, v{s1}, v{s2}",
          f"v_and_b32 v{t0}, 31, v{lane}", f"v_lshrrev_b32 v{t1}, 5, v{lane}", f"v_lshlrev_b32 v{t1}, 2, v{t1}",
          f"v_lshl_add_u32 v{t0}, v{t0}, 3, v{t1}",
          f"buffer_store_dword v{s1}, v{t0}, s[20:23], s{sA} offen")
    else:
        a(f"v_and_b32 v{t0}, 31, v{lane}", f"v_lshrrev_b32 v{t1}, 5, v{lane}", f"v_lshlrev_b32 v{t1}, 4, v{t1}",
          f"v_lshl_add_u32 v{t0}, v{t0}, 10, v{t1}",
          f"v_permlane32_swap_b32 v{pk}, v{pk+2}", f"v_permlane32_swap_b32 v{pk+1}, v{pk+3}",
          f"v_permlane32_swap_b32 v{pk+4}, v{pk+6}", f"v_permlane32_swap_b32 v{pk+5}, v{pk+7}",
          f"s_lshl_b32 s{sT0}, s{sMb}, 1", f"s_add_u32 s{sT0}, s{sT0}, s{sMt}", f"s_lshl_b32 s{sT0}, s{sT0}, 15",
          f"s_lshl_b32 s{sT1}, s{sNs}, 7", f"s_add_u32 s{sT0}, s{sT0}, s{sT1}",
          f"s_lshl_b32 s{sT1}, s{sNt}, 6", f"s_add_u32 s{sT0}, s{sT0}, s{sT1}",
          f"buffer_store_dwordx4 {v(pk,4)}, v{t0}, s[16:19], s{sT0} offen",
          f"buffer_store_dwordx4 {v(pk+4,4)}, v{t0}, s[16:19], s{sT0} offen offset:32")
    a.label(done)
    a("s_endpgm")
    return dict(name=NAME, grid=256, block=256, lds=LDS, vgpr=act + D * 8)
```

```python
from common import *
NAME = "gateup_kernel"
CS = 98304
LDS = CS + 512
def gen(a):
    kernel_head(a, NAME)
    done = "L_k4_done"
    a("s_cmp_ge_u32 s2, 232", f"s_cbranch_scc1 {done}")
    a(f"s_load_dwordx4 s[4:7], s[0:1], {KA_WG}", f"s_load_dwordx2 s[8:9], s[0:1], {KA_WS}")
    sX, sS, sWv, sC, sT0, sT1, sH, sW, sM, sMtile = 24, 25, 26, 27, 28, 29, 30, 31, 32, 33
    lane, t0, t1, t2, vG, vW, vR = 1, 5, 6, 7, 2, 3, 4
    vSel = 8
    wf = [[12, 16, 20], [24, 28, 32]]
    cacc = [36, 40, 44]
    st = 48
    hf = 64
    acc = [96, 112, 128]
    a(f"s_and_b32 s{sX}, s2, 7", f"s_lshr_b32 s{sS}, s2, 3")
    a(f"v_lshrrev_b32 v{t0}, 6, v0", f"v_and_b32 v{lane}, 63, v0", f"v_readfirstlane_b32 s{sWv}, v{t0}",
      f"v_lshlrev_b32 v{vG}, 4, v{lane}")
    a(f"s_and_b32 s{sT0}, s{sWv}, 1", f"s_lshl_b32 s{sT1}, s{sT0}, 2",
      f"v_lshrrev_b32 v{t0}, 1, v{lane}", f"v_xor_b32 v{t0}, s{sT1}, v{t0}",
      f"v_mul_u32_u24 v{vW}, 2752, v{t0}", f"v_and_b32 v{t1}, 1, v{lane}", f"v_lshl_add_u32 v{vW}, v{t1}, 4, v{vW}",
      f"s_lshr_b32 s{sT1}, s{sWv}, 1",
      f"s_mul_i32 s{sW}, s{sT1}, {32*2752}", f"s_mul_i32 s{sM}, s{sS}, 96", f"s_add_u32 s{sW}, s{sW}, s{sM}",
      f"s_mul_i32 s{sM}, s{sT1}, 6144", f"s_lshl_b32 s{sT1}, s{sT0}, 10", f"s_add_u32 s{sM}, s{sM}, s{sT1}",
      f"s_lshl_b32 s{sMtile}, s{sX}, 3", f"s_add_u32 s{sMtile}, s{sMtile}, s{sWv}",
      f"s_lshl_b32 s{sH}, s{sMtile}, 15", f"s_add_u32 s{sH}, s{sH}, {HF:#x}",
      f"s_cmp_eq_u32 s{sT0}, 0")
    a("s_waitcnt lgkmcnt(0)")
    a("s_cselect_b32 s4, s4, s6", "s_cselect_b32 s5, s5, s7")
    srd(a, 12, 4, 512 * 2752); srd(a, 20, 8, WS_END)
    def issueW():
        for ft in range(3):
            a(f"s_add_u32 m0, s{sM}, {ft*2048}", f"s_add_u32 s{sT0}, s{sW}, {ft*32}",
              f"buffer_load_dwordx4 v{vW}, s[12:15], s{sT0} offen lds")
        a(f"s_add_u32 s{sM}, s{sM}, 24576", f"s_add_u32 s{sW}, s{sW}, {128*2752}")
    def issueH(k):
        a(f"buffer_load_dwordx4 {v(hf+4*k,4)}, v{vG}, s[20:23], s{sH} offen offset:{(k&3)*1024}")
        if k & 3 == 3:
            a(f"s_add_u32 s{sH}, s{sH}, 4096")
    issueW()
    for k in range(8): issueH(k)
    a(f"v_and_b32 v{t0}, 31, v{lane}", f"v_lshlrev_b32 v{t0}, 3, v{t0}", f"v_lshrrev_b32 v{t1}, 5, v{lane}",
      f"v_lshl_add_u32 v{t0}, v{t1}, 11, v{t0}",
      f"s_lshl_b32 s{sT0}, s{sMtile}, 12", f"s_add_u32 s{sT0}, s{sT0}, {ST:#x}")
    for i in range(8):
        a(f"buffer_load_dwordx2 {v(st+2*i,2)}, v{t0}, s[20:23], s{sT0} offen offset:{i*256}")
    issueW()
    a(f"v_bfe_u32 v{t0}, v{lane}, 2, 2", f"v_lshrrev_b32 v{t1}, 5, v{lane}", f"v_bfe_u32 v{t2}, v{lane}, 4, 1",
      f"v_xor_b32 v{t1}, v{t1}, v{t2}", f"v_lshl_add_u32 v{t0}, v{t1}, 2, v{t0}",
      f"v_lshlrev_b32 v{t0}, 5, v{t0}", f"v_lshl_add_u32 v{t0}, v{t2}, 10, v{t0}",
      f"v_and_b32 v{t1}, 3, v{lane}", f"v_lshl_add_u32 v{vR}, v{t1}, 3, v{t0}")
    make_sel(a, vSel, lane, t0, t1)
    for r in list(range(cacc[0], cacc[0] + 12)) + list(range(acc[0], acc[0] + 48)):
        a(f"v_mov_b32 v{r}, 0")
    a(f"v_lshlrev_b32 v{t0}, 3, v{lane}", f"ds_write_b64 v{t0}, {v(cacc[0],2)} offset:{CS - 65536}" if False else f"v_add_u32 v{t0}, {CS}, v{t0}",
      f"ds_write_b64 v{t0}, {v(cacc[0],2)}")
    def reads(ks, b):
        for ft in range(3):
            o = (ks >> 1) * 6144 + ft * 2048 + (ks & 1) * 512
            a(f"ds_read_b64_tr_b16 {v(wf[b][ft],2)}, v{vR} offset:{o}", f"ds_read_b64_tr_b16 {v(wf[b][ft]+2,2)}, v{vR} offset:{o+256}")
    q = ["W0"] * 3 + [f"h{k}" for k in range(8)] + ["st"] * 8 + ["W1"] * 3
    def waitfor(tag):
        n = len(q) - (max(k for k, t in enumerate(q) if t == tag) + 1)
        return n
    a(f"s_waitcnt vmcnt({waitfor('W0')}) lgkmcnt(0)", "s_barrier")
    reads(0, 0)
    for c in range(4):
        for ks in range(8):
            g = 8 * c + ks; b = g & 1
            if ks < 7:
                reads(ks + 1, b ^ 1)
                a(f"s_waitcnt vmcnt({waitfor(f'h{g}')}) lgkmcnt(6)")
            elif c < 3:
                n = min(waitfor(f"h{g}"), waitfor(f"W{c+1}"))
                a(f"v_add_u32 v{vR}, 24576, v{vR}", f"s_waitcnt vmcnt({n}) lgkmcnt(0)", "s_barrier")
                reads(0, b ^ 1)
            else:
                a(f"s_waitcnt vmcnt({waitfor(f'h{g}')}) lgkmcnt(0)")
            for ft in range(3):
                a(mfma32(acc[ft], wf[b][ft], hf + 4 * ks))
            if c < 3:
                issueH(ks); q.append(f"h{g+8}")
            if ks == 0 and c < 2:
                issueW(); q.extend([f"W{c+2}"] * 3)
            lab = a.newlabel("k4c")
            a(f"s_cmp_lg_u32 s{sWv}, {ks}", f"s_cbranch_scc1 {lab}")
            for ft in range(3):
                a(mfma16(cacc[ft], vSel, wf[b][ft]))
            a.label(lab)
    mu, r2 = 12, 14
    for i in range(1, 8):
        a(f"v_pk_add_f32 {v(st,2)}, {v(st,2)}, {v(st+2*i,2)}")
    a(f"v_lshlrev_b32 v{t0}, 2, v{lane}", f"v_add_u32 v{t0}, {CS}, v{t0}",
      f"v_mov_b32 v{st+2}, v{st}", f"v_mov_b32 v{st+3}, v{st+1}",
      "s_mov_b64 exec, 0xffff")
    for ft in range(3):
        a(f"ds_add_f32 v{t0}, v{cacc[ft]} offset:{ft*128}", f"ds_add_f32 v{t0}, v{cacc[ft]+1} offset:{ft*128+64}")
    a("s_mov_b64 exec, -1",
      f"v_permlane32_swap_b32 v{st}, v{st+2}", f"v_permlane32_swap_b32 v{st+1}, v{st+3}",
      f"v_lshrrev_b32 v{t0}, 5, v{lane}", f"v_lshlrev_b32 v{t0}, 4, v{t0}", f"v_add_u32 v{t0}, {CS}, v{t0}",
      f"v_pk_add_f32 {v(st,2)}, {v(st,2)}, {v(st+2,2)}",
      f"s_mov_b32 s{sT1}, 0x3b000000",
      "s_waitcnt lgkmcnt(0)", "s_barrier")
    cv = hf
    cv = 16
    a(f"v_mul_f32 v{mu}, s{sT1}, v{st}", f"v_mul_f32 v{r2}, s{sT1}, v{st+1}")
    for ft in range(3):
        for gg in range(4):
            a(f"ds_read_b128 {v(cv+ft*16+gg*4,4)}, v{t0} offset:{ft*128+gg*32}")
    a(f"v_fma_f32 v{r2}, -v{mu}, v{mu}, v{r2}", f"v_max_f32 v{r2}, 0, v{r2}", f"v_add_f32 v{r2}, 0x3727c5ac, v{r2}",
      f"v_rcp_f32 v{r2}, v{r2}",
      f"s_mul_i32 s{sT0}, s{sMtile}, 86", f"s_mul_i32 s{sT1}, s{sS}, 3", f"s_add_u32 s{sT0}, s{sT0}, s{sT1}",
      f"s_lshl_b32 s{sT0}, s{sT0}, 10", f"s_add_u32 s{sT0}, s{sT0}, {GF:#x}")
    for ft in range(3):
        A = acc[ft]
        a(f"s_waitcnt lgkmcnt({8 - 4*ft})")
        for i in range(0, 16, 2):
            a(f"v_pk_fma_f32 {v(A+i,2)}, {v(cv+ft*16+i,2)}, {v(mu,2)}, {v(A+i,2)} op_sel_hi:[1,0,1] neg_lo:[0,1,0] neg_hi:[0,1,0]")
        for i in range(8):
            a(f"v_max_f32 v{A+i}, 0, v{A+i}")
        for i in range(0, 8, 2):
            a(f"v_pk_mul_f32 {v(A+8+i,2)}, {v(A+8+i,2)}, {v(r2,2)} op_sel_hi:[1,0]")
        for i in range(0, 8, 2):
            a(f"v_pk_mul_f32 {v(A+i,2)}, {v(A+i,2)}, {v(A+8+i,2)}")
        for i in range(4):
            a(f"v_cvt_pk_bf16_f32 v{hf+4*ft+i}, v{A+2*i}, v{A+2*i+1}")
        if ft == 2:
            a(f"s_cmp_ge_u32 s{sS}, 28", f"s_cbranch_scc1 {done}")
        a(f"buffer_store_dwordx4 {v(hf+4*ft,4)}, v{vG}, s[20:23], s{sT0} offen offset:{ft*1024}")
    a.label(done)
    a("s_endpgm")
    return dict(name=NAME, grid=232, block=512, lds=LDS, vgpr=144)
```

```python
import sys
sys.path.insert(0, "gen")
from common import *
import k1, k2, k35, k4
def build(extra_empty=0):
    a = Asm()
    ks = [k1.gen(a), k2.gen(a), k35.gen(a, "wo"), k4.gen(a), k35.gen(a, "down")]
    ref = open("sequential_preLN__softmax_full_mha__glu_gated_reglu__prompt.s.ref").read().split("\n")
    hdr = [l for l in ref if l.startswith(";") and "@launch" not in l and "Override" not in l and "grid=ceil" not in l]
    hdr = hdr[:11]
    out = "\n".join(hdr) + "\n"
    for k in ks:
        out += f"; @launch kernel={k['name']} grid=({k['grid']},1,1) block=({k['block']},1,1) lds={k['lds']}\n"
    out += '.amdgcn_target "amdgcn-amd-amdhsa--gfx950"\n.text\n' + a.text() + '.section .rodata,"a"\n'
    for k in ks:
        out += kernel_desc(k["name"], k["vgpr"])
    return out
if __name__ == "__main__":
    p = sys.argv[1] if len(sys.argv) > 1 else "sequential_preLN__softmax_full_mha__glu_gated_reglu__prompt.s"
    open(p, "w").write(build())
```

```python
QF = 0x000000
KF = 0x200000
VF = 0x400000
OF = 0x600000
HF = 0x800000
ST = 0xA00000
GF = 0xB00000
WS_END = GF + 64 * 86 * 1024
KA_X, KA_WQKV, KA_WO, KA_BX, KA_WG, KA_WU, KA_WD, KA_OUT, KA_DBG, KA_WS = [8 * i for i in range(10)]

STAMP = 0x2000000
class Asm:
    def __init__(self, diag=False):
        self.L = []
        self.uid = 0
        self.diag = diag
        self.kidx = -1
        self.nst = 0
    def stamp(self, idx=None):
        k = self.nst if idx is None else idx
        if idx is None: self.nst += 1
        if self.diag:
            assert k < 30
            self("s_memrealtime s[96:97]", "s_waitcnt lgkmcnt(0)", f"v_writelane_b32 v255, s96, {k}")
    def stamp_flush(self):
        self.stamp()
        if self.diag: self("s_waitcnt vmcnt(0)")
        self.stamp()
        if not self.diag: return
        self(f"s_load_dwordx2 s[44:45], s[0:1], {KA_WS}", "s_memtime s[96:97]",
             "s_waitcnt lgkmcnt(0)", "s_sub_u32 s96, s96, s98", "s_and_b32 s45, s45, 0xffff", "s_mov_b32 s46, 0x4000000", "s_mov_b32 s47, 0x20000",
             "v_writelane_b32 v255, s96, 31",
             "v_lshrrev_b32 v1, 6, v0", "v_lshlrev_b32 v1, 7, v1", "v_and_b32 v2, 63, v0", "v_lshl_add_u32 v1, v2, 2, v1",
             f"s_lshl_b32 s48, s2, 10", f"s_add_u32 s48, s48, {STAMP + self.kidx * 0x40000:#x}", "s_mov_b64 exec, 0xffffffff",
             "buffer_store_dword v255, v1, s[44:47], s48 offen")
    def __call__(self, *txt):
        for t in txt:
            for line in t.split("\n"):
                self.L.append("    " + line.strip())
    def label(self, n):
        self.L.append(n + ":")
    def raw(self, t):
        self.L.append(t)
    def newlabel(self, p):
        self.uid += 1
        return f"L_{p}_{self.uid}"
    def text(self):
        return "\n".join(self.L) + "\n"

def v(a, n=1):
    return f"v{a}" if n == 1 else f"v[{a}:{a+n-1}]"
def s(a, n=1):
    return f"s{a}" if n == 1 else f"s[{a}:{a+n-1}]"

def srd(a, d, ptr, size):
    a(f"s_mov_b32 s{d}, s{ptr}", f"s_and_b32 s{d+1}, s{ptr+1}, 0xffff",
      f"s_mov_b32 s{d+2}, {size:#x}", f"s_mov_b32 s{d+3}, 0x20000")

def kernel_head(a, name):
    a.raw(f".globl {name}")
    a.raw(".p2align 8")
    a.raw(f".type {name},@function")
    a.label(name)
    a.kidx += 1
    a.nst = 0
    a.stamp()
    if a.diag: a("s_memtime s[98:99]")

def kernel_desc(name, vgpr, sgpr=96, accum=None):
    if accum is None:
        accum = (vgpr + 3) // 4 * 4
    return f""".p2align 6
.amdhsa_kernel {name}
  .amdhsa_next_free_vgpr {vgpr}
  .amdhsa_next_free_sgpr {sgpr}
  .amdhsa_accum_offset {accum}
  .amdhsa_group_segment_fixed_size 0
  .amdhsa_kernarg_size 80
  .amdhsa_user_sgpr_count 2
  .amdhsa_user_sgpr_kernarg_segment_ptr 1
  .amdhsa_system_sgpr_workgroup_id_x 1
.end_amdhsa_kernel
"""

def mfma32(d, a_, b, c=None):
    c = v(d, 16) if c is None else c
    return f"v_mfma_f32_32x32x16_bf16 {v(d,16)}, {v(a_,4)}, {v(b,4)}, {c}"
def mfma16(d, a_, b):
    return f"v_mfma_f32_16x16x32_bf16 {v(d,4)}, {v(a_,4)}, {v(b,4)}, {v(d,4)}"

def make_sel(a, vsel, lane, t0, t1):
    a(f"v_and_b32 v{t0}, 15, v{lane}",
      f"v_bfe_u32 v{t1}, v{lane}, 4, 1",
      f"v_cmp_eq_u32 vcc, v{t0}, v{t1}",
      f"v_mov_b32 v{t0}, 0x3f803f80",
      "s_nop 1",
      f"v_cndmask_b32 v{vsel}, 0, v{t0}, vcc")
    for i in range(1, 4):
        a(f"v_mov_b32 v{vsel+i}, v{vsel}")
```

```python
import sys, math, struct
sys.path.insert(0, "gen")
from common import *
NAME = "sequential_preLN__softmax_full_mha__glu_gated_reglu__prompt_kernel"
LDS = 163840
ST2 = 0xA00000
FLAGS = 0x1100000
TAGLOC = 0x1108000
WS_SZ = 0x1110000
SC = "sc0 sc1"
rX, rW1, rWS, rWO, rW4, rWD, rOUT, rDBG = 8, 12, 16, 20, 24, 28, 32, 36
sX, sJ, sWv, sTag, sT0, sT1, sT2, sT3 = 40, 41, 42, 43, 44, 45, 46, 47
S_ = lambda r: f"s[{r}:{r+3}]"
lane, vG = 1, 2
SYNCW = 7
SPIN = 200000

class Q:
    def __init__(s): s.q = []
    def push(s, tag, n=1): s.q.extend([tag] * n)
    def n_after(s, tag):
        idx = [k for k, t in enumerate(s.q) if t == tag]
        return len(s.q) - (idx[-1] + 1)

def signal(a, sync, grp, mem, first=False):
    lab = a.newlabel("sig")
    a(f"s_cmp_lg_u32 s{sWv}, {SYNCW}", f"s_cbranch_scc1 {lab}")
    a(f"s_lshl_b32 s{sT0}, s{grp}, 8", f"s_lshl_b32 s{sT1}, s{mem}, 2", f"s_add_u32 s{sT0}, s{sT0}, s{sT1}",
      f"s_add_u32 s{sT0}, s{sT0}, {FLAGS + sync*2048:#x}",
      f"v_mov_b32 v4, s{sTag}", "v_mov_b32 v3, 0", "s_mov_b64 exec, 1",
      f"buffer_store_dword v4, v3, {S_(rWS)}, s{sT0} offen {SC}",
      "s_mov_b64 exec, -1")
    a.label(lab)

def poll(a, sync, nmem=32):
    lab = a.newlabel("pollskip"); loop = a.newlabel("poll")
    a(f"s_cmp_lg_u32 s{sWv}, {SYNCW}", f"s_cbranch_scc1 {lab}")
    a(f"s_lshl_b32 s{sT0}, s{sX}, 8", f"s_add_u32 s{sT0}, s{sT0}, {FLAGS + sync*2048:#x}",
      f"v_lshlrev_b32 v3, 2, v{lane}", f"s_mov_b64 exec, {(1 << nmem) - 1:#x}", f"s_mov_b32 s{sT1}, {SPIN}")
    a.label(loop)
    a(f"buffer_load_dword v4, v3, {S_(rWS)}, s{sT0} offen {SC}", f"s_sub_u32 s{sT1}, s{sT1}, 1", f"s_cbranch_scc1 {loop}_out",
      "s_waitcnt vmcnt(0)", f"v_cmp_ne_u32 vcc, s{sTag}, v4", f"s_cbranch_vccnz {loop}")
    a.label(loop + "_out")
    a("s_mov_b64 exec, -1")
    a.label(lab)
    a("s_barrier")

def gen(a):
    kernel_head(a, NAME)
    done = "L_done"
    a("s_cmp_ge_u32 s2, 256", f"s_cbranch_scc1 {done}")
    a("s_load_dwordx16 s[64:79], s[0:1], 0")
    pb = 64
    a(f"s_load_dwordx4 s[4:7], s[0:1], {KA_DBG}")
    a(f"s_and_b32 s{sX}, s2, 7", f"s_lshr_b32 s{sJ}, s2, 3")
    a(f"v_lshrrev_b32 v3, 6, v0", f"v_and_b32 v{lane}, 63, v0", f"v_readfirstlane_b32 s{sWv}, v3",
      f"v_lshlrev_b32 v{vG}, 4, v{lane}")
    a(f"s_cmp_ge_u32 s{sWv}, 4", "s_cbranch_scc1 L_p1_loader")
    def srds():
        a("s_waitcnt lgkmcnt(0)")
        srd(a, rX, pb + 0, 0x200000); srd(a, rW1, pb + 2, 512 * 3072); srd(a, rWS, 6, WS_SZ)
        srd(a, rWO, pb + 4, 512 * 1024); srd(a, rWD, pb + 12, 1376 * 1024); srd(a, rOUT, pb + 14, 0x200000); srd(a, rDBG, 4, 256)
        a(f"s_and_b32 s{sT0}, s{sWv}, 1", f"s_cmp_eq_u32 s{sT0}, 0",
          f"s_cselect_b32 s{pb+8}, s{pb+8}, s{pb+10}", f"s_cselect_b32 s{pb+9}, s{pb+9}, s{pb+11}")
        srd(a, rW4, pb + 8, 512 * 2752)
    t0, t1, t2 = 5, 6, 7
    sC, sG, sMt, sSlot = 48 + 32, 49 + 32, 50 + 32, 51 + 32
    vXA = [8, 9, 10, 11]; vWA = [12, 13, 14, 15]; vSel = 16
    xf = [20, 24]; wf = [[28, 32, 36], [40, 44, 48]]
    s1 = 52; cacc = [56, 60, 64]; s2l, s2h = 68, 69; tmp = 70
    accQ, accK, accV = 80, 96, 112
    srds()
    a(f"s_and_b32 s{sMt}, s{sWv}, 1", f"s_lshr_b32 s{sG}, s{sWv}, 1")
    a(f"v_and_b32 v{t0}, 31, v{lane}", f"v_lshrrev_b32 v{t1}, 5, v{lane}", f"v_bfe_u32 v{t2}, v{lane}, 1, 3",
      f"v_xor_b32 v{t1}, v{t1}, v{t2}", f"s_lshl_b32 s{sT0}, s{sWv}, 1", f"v_xor_b32 v{t1}, s{sT0}, v{t1}",
      f"v_lshlrev_b32 v{t1}, 4, v{t1}", f"v_lshl_add_u32 v{t1}, v{t0}, 7, v{t1}",
      f"s_lshl_b32 s{sT0}, s{sMt}, 12", f"v_add_u32 v{vXA[0]}, s{sT0}, v{t1}")
    for p in range(1, 4): a(f"v_xor_b32 v{vXA[p]}, {p*32}, v{vXA[0]}")
    a(f"v_bfe_u32 v{t0}, v{lane}, 2, 2", f"v_lshrrev_b32 v{t1}, 5, v{lane}", f"v_lshl_add_u32 v{t0}, v{t1}, 3, v{t0}",
      f"v_lshlrev_b32 v{t0}, 7, v{t0}", f"v_and_b32 v{t1}, 3, v{lane}", f"v_lshl_add_u32 v{t0}, v{t1}, 3, v{t0}",
      f"v_bfe_u32 v{t1}, v{lane}, 4, 1", f"v_lshl_add_u32 v{t0}, v{t1}, 5, v{t0}",
      f"v_bfe_u32 v{t1}, v{lane}, 3, 1", f"v_xor_b32 v{t1}, s{sG}, v{t1}", f"v_lshl_add_u32 v{t0}, v{t1}, 6, v{t0}",
      f"s_lshl_b32 s{sT0}, s{sWv}, 11", f"s_add_u32 s{sT0}, s{sT0}, 8192", f"v_add_u32 v{vWA[0]}, s{sT0}, v{t0}")
    for p in range(1, 4): a(f"v_xor_b32 v{vWA[p]}, {p*2048}, v{vWA[0]}")
    make_sel(a, vSel, lane, t0, t1)
    for r in list(range(s1, s2h + 1)) + list(range(accQ, accV + 16)):
        a(f"v_mov_b32 v{r}, 0")
    E_S1, E_S2, E_C, E_R = 131072, 131072 + 512, 131072 + 1536, 131072 + 3072
    vm, vhh = 192, 193
    vS2w, vS1w, vCw, vS1r, vS2r, vCvr, vCr, vRw, vRr, vq, vk, vv = range(194, 206)
    a(f"v_and_b32 v{vm}, 31, v{lane}", f"v_lshrrev_b32 v{vhh}, 5, v{lane}",
      f"s_lshl_b32 s{sT0}, s{sWv}, 8", f"s_add_u32 s{sT1}, s{sT0}, {E_S2}", f"v_lshl_add_u32 v{vS2w}, v{lane}, 2, s{sT1}",
      f"s_add_u32 s{sT1}, s{sT0}, {E_R}", f"v_lshl_add_u32 v{vRw}, v{vm}, 2, s{sT1}", f"v_lshl_add_u32 v{vRr}, v{vhh}, 4, s{sT1}",
      f"s_lshl_b32 s{sT0}, s{sWv}, 7", f"s_add_u32 s{sT0}, s{sT0}, {E_S1}", f"v_lshl_add_u32 v{vS1w}, v{lane}, 2, s{sT0}",
      f"s_lshl_b32 s{sT0}, s{sMt}, 1", f"s_add_u32 s{sT0}, s{sT0}, s{sG}", f"s_mul_i32 s{sT0}, s{sT0}, 384",
      f"s_add_u32 s{sT0}, s{sT0}, {E_C}", f"v_lshl_add_u32 v{vCw}, v{lane}, 2, s{sT0}",
      f"s_lshl_b32 s{sT0}, s{sMt}, 7", f"s_add_u32 s{sT0}, s{sT0}, {E_S1}", f"v_lshl_add_u32 v{vS1r}, v{vm}, 2, s{sT0}",
      f"s_lshl_b32 s{sT0}, s{sMt}, 8", f"s_add_u32 s{sT0}, s{sT0}, {E_S2}", f"v_lshl_add_u32 v{vS2r}, v{vm}, 2, s{sT0}",
      f"s_mul_i32 s{sT0}, s{sG}, 384", f"s_add_u32 s{sT0}, s{sT0}, {E_C}",
      f"v_lshl_add_u32 v{vCvr}, v{vm}, 2, s{sT0}", f"v_lshl_add_u32 v{vCr}, v{vhh}, 4, s{sT0}")
    a(f"s_lshl_b32 s{sT0}, s{sX}, 2", f"s_lshl_b32 s{sT1}, s{sG}, 1", f"s_add_u32 s{sT0}, s{sT0}, s{sT1}",
      f"s_lshl_b32 s{sT0}, s{sT0}, 16",
      f"s_lshl_b32 s{sT1}, s{sJ}, 1", f"s_add_u32 s{sT1}, s{sT1}, s{sMt}", f"s_lshl_b32 s{sT1}, s{sT1}, 10",
      f"s_add_u32 s{sT0}, s{sT0}, s{sT1}",
      f"v_add_u32 v{vq}, s{sT0}, v{vG}",
      f"v_and_b32 v{t0}, 0x33, v{lane}",
      f"v_bfe_u32 v{t1}, v{lane}, 2, 1", f"v_lshl_or_b32 v{t0}, v{t1}, 3, v{t0}",
      f"v_bfe_u32 v{t1}, v{lane}, 3, 1", f"v_lshl_or_b32 v{t0}, v{t1}, 2, v{t0}",
      f"v_lshl_add_u32 v{vk}, v{t0}, 4, s{sT0}",
      f"v_and_b32 v{t0}, 15, v{lane}", f"v_lshlrev_b32 v{t0}, 4, v{t0}", f"v_lshl_add_u32 v{t0}, v{vhh}, 8, v{t0}",
      f"v_bfe_u32 v{t1}, v{lane}, 4, 1", f"v_lshl_add_u32 v{t0}, v{t1}, 16, v{t0}",
      f"v_add_u32 v{vv}, s{sT0}, v{t0}")
    def reads1(p, buf):
        a(f"ds_read_b128 {v(xf[buf],4)}, v{vXA[p]}")
        for mat in range(3):
            a(f"ds_read_b64_tr_b16 {v(wf[buf][mat],2)}, v{vWA[p]} offset:{mat*8192}",
              f"ds_read_b64_tr_b16 {v(wf[buf][mat]+2,2)}, v{vWA[p]} offset:{mat*8192+512}")
    a.stamp()
    a("s_barrier")
    a.stamp()
    reads1(0, 0)
    a(f"s_mov_b32 s{sC}, 0")
    a.label("L_p1_loop")
    for p in range(4):
        cur = p & 1; nxt = cur ^ 1
        if p < 3:
            reads1(p + 1, nxt)
            a("s_waitcnt lgkmcnt(7)")
        else:
            for r in vXA + vWA:
                a(f"v_xor_b32 v{r}, s{sSlot}, v{r}")
            a("s_waitcnt lgkmcnt(0)", "s_barrier")
            reads1(0, nxt)
        extra = []
        if p in (1, 2):
            x0 = xf[cur]
            for i in range(4):
                extra += [f"v_lshlrev_b32 v{tmp+2*i}, 16, v{x0+i}", f"v_and_b32 v{tmp+2*i+1}, 0xffff0000, v{x0+i}"]
            for i in range(4):
                extra += [f"v_fmac_f32 v{s2l}, v{tmp+2*i}, v{tmp+2*i}", f"v_fmac_f32 v{s2h}, v{tmp+2*i+1}, v{tmp+2*i+1}"]
        ms = [mfma32(accQ, wf[cur][0], xf[cur]), mfma32(accK, wf[cur][1], xf[cur]), mfma32(accV, xf[cur], wf[cur][2])]
        if p in (1, 2):
            a(ms[0], *extra[0:5]); a(ms[1], *extra[5:10]); a(ms[2], *extra[10:16]); a(mfma16(s1, vSel, xf[cur]))
        else:
            a(ms[0])
            if p == 0:
                a(f"s_add_u32 s{sT0}, s{sC}, 1", f"s_xor_b32 s{sT1}, s{sT0}, s{sC}",
                  f"s_and_b32 s{sT1}, s{sT1}, 3", f"s_lshl_b32 s{sSlot}, s{sT1}, 15", f"s_mov_b32 s{sC}, s{sT0}")
            a(ms[1], ms[2])
            if p == 3: a(f"s_cmp_lt_u32 s{sC}, 8")
            for mat in range(3):
                a(mfma16(cacc[mat], vSel, wf[cur][mat]))
    a("s_cbranch_scc1 L_p1_loop")
    a.stamp()
    e = 128
    a(f"v_add_f32 v{s2l}, v{s2l}, v{s2h}", "s_nop 5",
      f"ds_write_b32 v{vS2w}, v{s2l}",
      "s_mov_b64 exec, 0xffff",
      f"ds_write2_b32 v{vS1w}, v{s1}, v{s1+1} offset0:0 offset1:16")
    for t in range(3):
        a(f"ds_write2_b32 v{vCw}, v{cacc[t]}, v{cacc[t]+1} offset0:{t*32} offset1:{t*32+16}")
    a("s_mov_b64 exec, -1", "s_waitcnt lgkmcnt(0)", "s_barrier")
    a(f"ds_read2_b32 {v(20,2)}, v{vS1r} offset0:0 offset1:64",
      f"ds_read2_b32 {v(22,2)}, v{vS2r} offset0:0 offset1:32",
      f"ds_read2_b32 {v(24,2)}, v{vS2r} offset0:128 offset1:160",
      f"ds_read_b32 v26, v{vCvr} offset:256", f"ds_read_b32 v27, v{vCvr} offset:{256+768}")
    for mtp in range(2):
        for gg in range(4):
            a(f"ds_read_b128 {v(e + mtp*16 + gg*4, 4)}, v{vCr} offset:{mtp*768 + gg*32}")
    mu, rr, mur, rq, cv = 28, 30, 32, 34, 36
    qsb = struct.unpack("<I", struct.pack("<f", 0.25 * math.log2(math.e)))[0]
    a(f"s_mov_b32 s{sT1}, 0x3b000000", "s_waitcnt lgkmcnt(8)",
      "v_add_f32 v20, v20, v21", "v_add_f32 v22, v22, v23", "v_add_f32 v24, v24, v25",
      f"v_mul_f32 v{mu}, s{sT1}, v20", "v_add_f32 v22, v22, v24", f"v_mul_f32 v22, s{sT1}, v22",
      f"v_fma_f32 v22, -v{mu}, v{mu}, v22", "v_max_f32 v22, 0, v22", "v_add_f32 v22, 0x3727c5ac, v22",
      f"v_rsq_f32 v{rr}, v22", f"v_add_f32 v{cv}, v26, v27",
      f"v_mul_f32 v{mur}, v{mu}, v{rr}", f"v_mul_f32 v{rq}, {qsb:#x}, v{rr}",
      f"ds_write2_b32 v{vRw}, v{rr}, v{mur} offset0:0 offset1:32")
    for mtp in range(2):
        for gg in range(4):
            a(f"ds_read_b128 {v(e + 32 + mtp*16 + gg*4, 4)}, v{vCr} offset:{mtp*768 + 128 + gg*32}")
    rreg, murreg = 40, 56
    sQ1, sK0, sK1, sV = sT0, sT1, sT2, sT3
    a(f"s_mov_b32 s{sQ1}, {QF + 65536:#x}", f"s_mov_b32 s{sK0}, {KF:#x}", f"s_mov_b32 s{sK1}, {KF + 65536:#x}", f"s_mov_b32 s{sV}, {VF:#x}")
    for t, (acc, sc) in enumerate(((accQ, rq), (accK, rr))):
        c0 = e + t * 32
        if t == 0:
            a("s_waitcnt lgkmcnt(8)")
        else:
            a("s_waitcnt lgkmcnt(8)")
        for i in range(0, 16, 2):
            a(f"v_pk_add_f32 {v(c0+i,2)}, {v(c0+i,2)}, {v(c0+16+i,2)}")
        if t == 0:
            for gg in range(4):
                a(f"ds_read_b128 {v(rreg+gg*4,4)}, v{vRr} offset:{gg*32}", f"ds_read_b128 {v(murreg+gg*4,4)}, v{vRr} offset:{128+gg*32}")
        for i in range(0, 16, 2):
            a(f"v_pk_fma_f32 {v(acc+i,2)}, {v(c0+i,2)}, {v(mu,2)}, {v(acc+i,2)} op_sel_hi:[1,0,1] neg_lo:[0,1,0] neg_hi:[0,1,0]")
        for i in range(0, 16, 2):
            a(f"v_pk_mul_f32 {v(acc+i,2)}, {v(acc+i,2)}, {v(sc,2)} op_sel_hi:[1,0]")
        for i in range(8):
            a(f"v_cvt_pk_bf16_f32 v{c0+i}, v{acc+2*i}, v{acc+2*i+1}")
        if t == 0:
            a(f"buffer_store_dwordx4 {v(c0,4)}, v{vq}, {S_(rWS)}, 0 offen {SC}", f"buffer_store_dwordx4 {v(c0+4,4)}, v{vq}, {S_(rWS)}, s{sQ1} offen {SC}")
        else:
            a(f"buffer_store_dwordx4 {v(c0,4)}, v{vk}, {S_(rWS)}, s{sK0} offen {SC}", f"buffer_store_dwordx4 {v(c0+4,4)}, v{vk}, {S_(rWS)}, s{sK1} offen {SC}")
    a("s_waitcnt lgkmcnt(0)")
    for i in range(0, 16, 2):
        a(f"v_pk_mul_f32 {v(accV+i,2)}, {v(accV+i,2)}, {v(rreg+i,2)}")
    for i in range(0, 16, 2):
        a(f"v_pk_fma_f32 {v(accV+i,2)}, {v(murreg+i,2)}, {v(cv,2)}, {v(accV+i,2)} op_sel_hi:[1,0,1] neg_lo:[0,1,0] neg_hi:[0,1,0]")
    for i in range(8):
        a(f"v_cvt_pk_bf16_f32 v{72+i}, v{accV+2*i}, v{accV+2*i+1}")
    a(f"buffer_store_dwordx4 {v(72,4)}, v{vv}, {S_(rWS)}, s{sV} offen {SC}", f"buffer_store_dwordx4 {v(76,4)}, v{vv}, {S_(rWS)}, s{sV} offen offset:512 {SC}")
    a("s_branch L_p1_join")
    a.label("L_p1_loader")
    nst_save = a.nst
    a.nst = 1
    vXa, vXb, vW = 8, 9, 10
    sLw, sXo, sWo, sM = sC, sG, sMt, sSlot
    a(f"v_lshrrev_b32 v{t0}, 3, v{lane}", f"v_and_b32 v{t1}, 7, v{lane}", f"v_lshrrev_b32 v{t2}, 4, v{lane}",
      f"v_xor_b32 v{vXa}, v{t1}, v{t2}", f"v_xor_b32 v{vXb}, 4, v{vXa}",
      f"v_lshlrev_b32 v{vXa}, 4, v{vXa}", f"v_lshlrev_b32 v{vXb}, 4, v{vXb}",
      f"v_lshl_add_u32 v{vXa}, v{t0}, 10, v{vXa}", f"v_lshl_add_u32 v{vXb}, v{t0}, 10, v{vXb}",
      f"s_sub_u32 s{sT2}, s{sWv}, 4",
      f"s_lshl_b32 s{sT0}, s{sJ}, 16", f"s_lshl_b32 s{sT1}, s{sT2}, 14", f"s_add_u32 s{sT0}, s{sT0}, s{sT1}",
      f"v_add_u32 v{vXa}, s{sT0}, v{vXa}", f"s_add_u32 s{sT0}, s{sT0}, 8192", f"v_add_u32 v{vXb}, s{sT0}, v{vXb}",
      f"v_and_b32 v{t2}, 1, v{t2}", f"v_lshlrev_b32 v{t2}, 2, v{t2}", f"v_xor_b32 v{t1}, v{t1}, v{t2}",
      f"v_lshlrev_b32 v{t1}, 4, v{t1}", f"v_mul_u32_u24 v{vW}, 3072, v{t0}", f"v_add_u32 v{vW}, v{vW}, v{t1}",
      f"s_mul_i32 s{sT0}, s{sT2}, {16*3072}", f"s_lshl_b32 s{sT1}, s{sX}, 7", f"s_add_u32 s{sT0}, s{sT0}, s{sT1}",
      f"v_add_u32 v{vW}, s{sT0}, v{vW}", f"s_lshl_b32 s{sT3}, s{sT2}, 11")
    srds()
    a(f"s_mov_b32 s{sM}, s{sT3}")
    def issue1(c):
        slot = (c & 3) * 32768
        a(f"s_add_u32 m0, s{sM}, {slot}", f"s_movk_i32 s{sT0}, {c*128}",
          f"buffer_load_dwordx4 v{vXa}, {S_(rX)}, s{sT0} offen lds",
          f"s_add_u32 m0, s{sM}, {slot+1024}", "s_nop 0",
          f"buffer_load_dwordx4 v{vXb}, {S_(rX)}, s{sT0} offen lds")
        for mat in range(3):
            for par in range(2):
                a(f"s_add_u32 m0, s{sM}, {slot + 8192 + mat*8192 + par*1024}",
                  f"s_mov_b32 s{sT0}, {c*64*3072 + par*24576 + mat*1024}",
                  f"buffer_load_dwordx4 v{vW}, {S_(rW1)}, s{sT0} offen lds")
    issue1(0)
    a(f"s_cmp_lg_u32 s{sWv}, {SYNCW}", "s_cbranch_scc1 L_notag", "s_cmp_lg_u32 s2, 0", "s_cbranch_scc1 L_notag",
      "v_mov_b32 v3, 0", f"s_mov_b32 s{sT0}, {TAGLOC:#x}", "s_mov_b64 exec, 1",
      f"buffer_load_dword v12, v3, {S_(rWS)}, s{sT0} offen {SC}", "v_mov_b32 v13, 1", "s_waitcnt vmcnt(0)",
      "v_add_u32 v12, 1, v12", "s_nop 0",
      f"buffer_store_dwordx2 v[12:13], v3, {S_(rDBG)}, 0 offen {SC}",
      f"buffer_store_dword v12, v3, {S_(rWS)}, s{sT0} offen {SC}",
      "s_waitcnt vmcnt(0)", "s_mov_b64 exec, -1")
    a.label("L_notag")
    for c in range(1, 4): issue1(c)
    a.stamp()
    a("s_waitcnt vmcnt(24)", "s_barrier")
    a.stamp()
    for c in range(8):
        if c < 7:
            a(f"s_waitcnt vmcnt({16 if c < 5 else (8 if c == 5 else 0)})")
        a("s_barrier")
        if c < 4: issue1(c + 4)
    a.stamp()
    a(f"s_cmp_lg_u32 s{sWv}, {SYNCW}", "s_cbranch_scc1 L_gottag", "v_mov_b32 v3, 0", "s_mov_b64 exec, 1", f"s_mov_b32 s{sT1}, {SPIN}")
    a.label("L_tagpoll")
    a(f"buffer_load_dwordx2 v[12:13], v3, {S_(rDBG)}, 0 offen {SC}", f"s_sub_u32 s{sT1}, s{sT1}, 1", "s_cbranch_scc1 L_tagout",
      "s_waitcnt vmcnt(0)", "v_cmp_eq_u32 vcc, 0, v13", "s_cbranch_vccnz L_tagpoll")
    a.label("L_tagout")
    a("s_waitcnt vmcnt(0)", f"v_readfirstlane_b32 s{sTag}, v12", "s_mov_b64 exec, -1")
    a.label("L_gottag")
    a("s_barrier")
    assert a.nst == nst_save
    a.label("L_p1_join")
    sHead, sTile, sKo, sM2, sMb, sNs = 84, 85, 86, 87, 88, 89
    vKA, vVA, vIdx, vWo, vW4 = 8, 9, 10, 11, 3
    vW4 = 206
    Qr = 4 + 8
    Kb = [16, 20]; Vb = [[24, 28], [32, 36]]
    S = [40, 56]; O = 72
    dummy = 88
    a(f"s_lshl_b32 s{sT0}, s{sX}, 2", f"s_and_b32 s{sHead}, s{sJ}, 3", f"s_add_u32 s{sHead}, s{sHead}, s{sT0}",
      f"s_lshr_b32 s{sT1}, s{sJ}, 2", f"s_lshl_b32 s{sTile}, s{sT1}, 3", f"s_add_u32 s{sTile}, s{sTile}, s{sWv}",
      f"s_lshr_b32 s{sT1}, s{sJ}, 3", f"s_add_u32 s{sMb}, s{sT0}, s{sT1}", f"s_and_b32 s{sNs}, s{sJ}, 7",
      f"s_lshl_b32 s{sM2}, s{sWv}, 10",
      f"s_lshl_b32 s{sKo}, s{sHead}, 16", f"s_add_u32 s{sKo}, s{sKo}, s{sM2}")
    a("s_waitcnt vmcnt(0)", "s_barrier")
    signal(a, 0, sX, sJ)
    a.stamp()
    a(f"v_and_b32 v{t0}, 15, v{lane}", f"v_lshlrev_b32 v{t0}, 4, v{t0}", f"v_lshrrev_b32 v{t1}, 5, v{lane}",
      f"v_lshl_add_u32 v{t0}, v{t1}, 8, v{t0}", f"v_add_u32 v{vVA}, 0x2000, v{t0}", f"v_add_u32 v{vVA+198}, 0x12000, v{t0}",
      f"v_add_u32 v{vKA}, 0x10000, v{vG}",
      f"v_mov_b32 v{vIdx}, 0xdddd",
      f"v_and_b32 v{t0}, 27, v{lane}", f"v_cmp_eq_u32 vcc, 16, v{t0}", f"v_mov_b32 v{t1}, 0x3f803f80", "s_nop 0",
      f"v_cndmask_b32 v{Vb[0][0]}, 0, v{t1}, vcc")
    vVH = vVA + 198
    for r in range(1, 16): a(f"v_mov_b32 v{Vb[0][0]+r}, v{Vb[0][0]}")
    for r in range(16): a(f"v_mov_b32 v{O+r}, 0")
    a(f"v_lshrrev_b32 v{t0}, 3, v{lane}", f"v_and_b32 v{t1}, 7, v{lane}", f"v_bfe_u32 v{t2}, v{lane}, 4, 1",
      f"v_lshlrev_b32 v{t2}, 2, v{t2}", f"v_xor_b32 v{t2}, v{t1}, v{t2}", f"v_lshlrev_b32 v{t2}, 4, v{t2}",
      f"v_lshl_add_u32 v{t2}, v{t0}, 10, v{t2}", f"s_lshl_b32 s{sT0}, s{sNs}, 7", f"v_add_u32 v{vWo}, s{sT0}, v{t2}")
    a(f"s_and_b32 s{sT0}, s{sWv}, 1", f"s_lshl_b32 s{sT1}, s{sT0}, 2",
      f"v_lshrrev_b32 v{t0}, 1, v{lane}", f"v_xor_b32 v{t0}, s{sT1}, v{t0}",
      f"v_mul_u32_u24 v{vW4}, 2752, v{t0}", f"v_and_b32 v{t1}, 1, v{lane}", f"v_lshl_add_u32 v{vW4}, v{t1}, 4, v{vW4}",
      f"s_mul_i32 s{sT0}, s{sJ}, 96", f"v_add_u32 v{vW4}, s{sT0}, v{vW4}")
    poll(a, 0)
    a.stamp()
    q = Q()
    a(f"s_lshl_b32 s{sT0}, s{sHead}, 16", f"s_lshl_b32 s{sT1}, s{sTile}, 10", f"s_add_u32 s{sT0}, s{sT0}, s{sT1}",
      f"buffer_load_dwordx4 {v(Qr,4)}, v{vG}, {S_(rWS)}, s{sT0} offen {SC}")
    q.push("Q")
    def issueKV(c):
        a(f"s_add_u32 m0, s{sM2}, {c*16384}", f"s_add_u32 s{sT0}, s{sKo}, {KF + c*8192:#x}",
          f"buffer_load_dwordx4 v{vG}, {S_(rWS)}, s{sT0} offen {SC} lds",
          f"s_add_u32 m0, s{sM2}, {c*16384+8192}", f"s_add_u32 s{sT0}, s{sKo}, {VF + c*8192:#x}",
          f"buffer_load_dwordx4 v{vG}, {S_(rWS)}, s{sT0} offen {SC} lds")
        q.push(f"KV{c}", 2)
    def issueWo(b, par):
        a(f"s_lshl_b32 s{sT0}, s{sM2}, 1", f"s_add_u32 m0, s{sT0}, {b*16384 + par*1024}",
          f"s_lshl_b32 s{sT0}, s{sM2}, 4", f"s_add_u32 s{sT0}, s{sT0}, {(16*b+par)*8192}",
          f"buffer_load_dwordx4 v{vWo}, {S_(rWO)}, s{sT0} offen lds")
        q.push("Wo")
    def issueW4(i, lds=True):
        a(f"s_lshr_b32 s{sT0}, s{sWv}, 1", f"s_add_u32 s{sT0}, s{sT0}, {4*i}",
          f"s_mul_i32 s{sT1}, s{sT0}, 43691", f"s_lshr_b32 s{sT1}, s{sT1}, 17",
          f"s_mul_i32 s{sT2}, s{sT1}, {32*2752 - 96}", f"s_lshl_b32 s{sT0}, s{sT0}, 5", f"s_add_u32 s{sT0}, s{sT0}, s{sT2}")
        if lds:
            a(f"s_add_u32 m0, s{sM2}, {65536 + i*8192}", "s_nop 0",
              f"buffer_load_dwordx4 v{vW4}, {S_(rW4)}, s{sT0} offen lds")
        else:
            a(f"buffer_load_dwordx4 {v(dummy,4)}, v{vW4}, {S_(rW4)}, s{sT0} offen")
        q.push("W4")
    def issueWdPre(i):
        a(f"s_lshl_b32 s{sT0}, s{sM2}, 3", f"s_add_u32 s{sT0}, s{sT0}, {i*65536}",
          f"buffer_load_dwordx4 {v(dummy,4)}, v{vWo}, {S_(rWD)}, s{sT0} offen")
        q.push("Wd")
    for c in range(3): issueKV(c)
    def kaddr(t):
        o = (t >> 3) * 16384 + (t & 7) * 1024
        return (vG, o) if o < 65536 else (vKA, o - 65536)
    def vaddr(t):
        o = (t >> 3) * 16384 + (t & 7) * 1024
        return (vVA, o) if o < 65536 else (vVH, o - 65536)
    def rdK(t, buf):
        r, o = kaddr(t); a(f"ds_read_b128 {v(Kb[buf],4)}, v{r} offset:{o}")
    def rdV(t, buf):
        r, o = vaddr(t)
        a("s_mov_b64 exec, s[90:91]",
          f"ds_read_b128 {v(Vb[buf][0],4)}, v{r} offset:{o}", f"ds_read_b128 {v(Vb[buf][1],4)}, v{r} offset:{o+512}",
          "s_mov_b64 exec, -1")
    em = 90
    a(f"s_mov_b32 s{em}, 0xffff", f"s_mov_b32 s{em+1}, 0xffff")
    a(f"s_waitcnt vmcnt({q.n_after('KV0')})", "s_barrier")
    a.stamp()
    rdK(0, 0); rdK(1, 1); rdV(0, 0)
    a("s_waitcnt lgkmcnt(3)", mfma32(S[0], Kb[0], Qr, "0"), "s_nop 7", "s_nop 3")
    E = lambda r: f"v_exp_f32 v{r}, v{r}"
    SM = lambda buf, h, sb: f"v_smfmac_f32_32x32x32_bf16 {v(O,16)}, {v(Vb[buf][h],4)}, {v(S[sb]+8*h,8)}, v{vIdx}"
    sched = {}
    def at(t, f): sched.setdefault(t, []).append(f)
    for c in range(3, 8): at(c - 3, lambda c=c: issueKV(c))
    for k, i in enumerate(range(8, 12)): at(5 + k, lambda i=i: issueW4(i))
    for k, i in enumerate(range(0, 8)): at(9 + k, lambda i=i: issueW4(i, False))
    for b in range(4):
        at(8 * (b + 1) + 7, lambda b=b: issueWo(b, 0)); at(8 * (b + 1) + 8, lambda b=b: issueWo(b, 1))
    for k in range(22): at(18 + k + (k // 6) * 2, lambda k=k: issueWdPre(k))
    for k in range(3):
        at(8 * (5 + k) + 6, lambda k=k: issueW4(2 * k)); at(8 * (5 + k) + 7, lambda k=k: issueW4(2 * k + 1))
    for t in range(64):
        c = t & 1; n = c ^ 1
        if t & 7 == 6 and t < 62:
            a(f"s_waitcnt vmcnt({q.n_after(f'KV{(t>>3)+1}')})", "s_barrier")
        if t == 62:
            a("s_barrier")
        a(E(S[c]), E(S[c] + 1))
        if t > 0: a(SM(n, 1, n))
        if t + 2 < 64: rdK(t + 2, c)
        if t + 1 < 64: rdV(t + 1, n)
        nl = (1 if t + 2 < 64 else 0) + (2 if t + 1 < 64 else 0)
        for r in range(2, 5): a(E(S[c] + r))
        if t + 1 < 64:
            a(f"s_waitcnt lgkmcnt({nl})", mfma32(S[n], Kb[n], Qr, "0"))
        else:
            a("s_waitcnt lgkmcnt(0)")
        for f in sched.get(t, []): f()
        for r in range(5, 11): a(E(S[c] + r))
        a(SM(c, 0, c))
        for r in range(11, 16): a(E(S[c] + r))
    a("s_nop 1", SM(1, 1, 1))
    a.stamp()
    l = O + 8; ri = 92
    sSlow = sKo
    a(f"s_mov_b32 s{sSlow}, 0", "s_nop 12")
    a.label("L_att_fin")
    a(f"v_rcp_f32 v{ri}, v{l}", f"s_mov_b32 s{sT0}, 0x21800000", f"s_mov_b32 s{sT1}, 0x5d800000",
      f"v_cmp_le_f32 s[4:5], s{sT0}, v{l}", f"v_cmp_ge_f32 s[6:7], s{sT1}, v{l}", f"v_mov_b32 v{t0}, 0")
    for r in range(8): a(f"v_mul_f32 v{O+r}, v{O+r}, v{ri}")
    for r in range(8): a(f"v_fmac_f32 v{t0}, 0, v{O+r}")
    a("s_and_b64 s[4:5], s[4:5], s[6:7]", f"v_cmp_o_f32 vcc, v{t0}, v{t0}")
    for r in range(4): a(f"v_cvt_pk_bf16_f32 v{S[0]+r}, v{O+2*r}, v{O+2*r+1}")
    a(f"s_lshl_b32 s{sT0}, s{sTile}, 5", f"s_add_u32 s{sT0}, s{sT0}, s{sHead}", f"s_lshl_b32 s{sT0}, s{sT0}, 10",
      f"s_add_u32 s{sT0}, s{sT0}, {OF:#x}",
      "s_and_b64 s[4:5], s[4:5], vcc", "s_cmp_eq_u64 s[4:5], exec", "s_cbranch_scc1 L_att_store",
      f"s_cmp_eq_u32 s{sSlow}, 0", "s_cbranch_scc1 L_att_slow")
    a.label("L_att_store")
    a(f"buffer_store_dwordx4 {v(S[0],4)}, v{vG}, {S_(rWS)}, s{sT0} offen {SC}")
    sKq = sHead
    a(f"s_lshr_b32 s{sT2}, s{sJ}, 2", f"s_and_b32 s{sT3}, s{sJ}, 3", f"s_lshl_b32 s{sT3}, s{sT3}, 3", f"s_add_u32 s{sT3}, s{sT3}, s{sX}")
    a("s_waitcnt vmcnt(0)", "s_barrier")
    signal(a, 1, sT2, sT3)
    a.stamp()
    a(f"s_and_b32 s{sMt}, s{sWv}, 1", f"s_lshr_b32 s{sKq}, s{sWv}, 1")
    q = Q()
    issueW4(6); issueW4(7)
    vR = [8, 9]
    a(f"v_bfe_u32 v{t0}, v{lane}, 2, 2", f"v_lshrrev_b32 v{t1}, 5, v{lane}", f"v_lshl_add_u32 v{t0}, v{t1}, 2, v{t0}",
      f"v_lshlrev_b32 v{t0}, 7, v{t0}", f"v_and_b32 v{t1}, 3, v{lane}", f"v_lshl_add_u32 v{t0}, v{t1}, 3, v{t0}",
      f"v_bfe_u32 v{t1}, v{lane}, 4, 1", f"v_lshl_add_u32 v{t0}, v{t1}, 5, v{t0}",
      f"v_bfe_u32 v{t1}, v{lane}, 3, 1", f"s_and_b32 s{sT0}, s{sKq}, 1", f"v_xor_b32 v{t1}, s{sT0}, v{t1}",
      f"v_lshl_add_u32 v{vR[0]}, v{t1}, 6, v{t0}", f"v_xor_b32 v{vR[1]}, 64, v{vR[0]}")
    wo = 96
    of = 160
    acc = [16, 32]
    a(f"s_lshl_b32 s{sT0}, s{sKq}, 14", f"v_add_u32 v{t0}, s{sT0}, v{vR[0]}", f"v_add_u32 v{t1}, s{sT0}, v{vR[1]}")
    for i in range(8):
        for n in range(2):
            a(f"ds_read_b64_tr_b16 {v(wo+i*8+n*4,2)}, v{t0+n} offset:{i*2048}",
              f"ds_read_b64_tr_b16 {v(wo+i*8+n*4+2,2)}, v{t0+n} offset:{i*2048+1024}")
    vXr = 10
    a(f"v_lshrrev_b32 v{t2}, 4, v{lane}", f"s_and_b32 s{sT0}, s{sWv}, 1", f"s_lshl_b32 s{sT0}, s{sT0}, 2",
      f"v_xor_b32 v{t2}, s{sT0}, v{t2}", f"v_and_b32 v12, 7, v{lane}", f"v_xor_b32 v{t2}, v12, v{t2}",
      f"v_lshlrev_b32 v{t2}, 4, v{t2}", f"v_lshrrev_b32 v12, 3, v{lane}", f"v_lshl_add_u32 v{t2}, v12, 10, v{t2}",
      f"s_lshl_b32 s{sT0}, s{sMb}, 16", f"s_lshl_b32 s{sT1}, s{sWv}, 13", f"s_add_u32 s{sT0}, s{sT0}, s{sT1}",
      f"s_lshl_b32 s{sT1}, s{sNs}, 7", f"s_add_u32 s{sT0}, s{sT0}, s{sT1}", f"v_add_u32 v{vXr}, s{sT0}, v{t2}")
    sMtile = sTile
    a(f"s_lshl_b32 s{sMtile}, s{sMb}, 1", f"s_add_u32 s{sMtile}, s{sMtile}, s{sMt}")
    RED, XIM = 0, 49152
    vRedW = [12, 13, 14]; vRedR = 15
    for d in range(1, 4):
        a(f"s_xor_b32 s{sT0}, s{sWv}, {2*d}", f"s_mul_i32 s{sT0}, s{sT0}, 6144", f"s_add_u32 s{sT0}, s{sT0}, {RED + (d-1)*2048}",
          f"v_add_u32 v{vRedW[d-1]}, s{sT0}, v{vG}")
    a(f"s_mul_i32 s{sT0}, s{sWv}, 6144", f"v_add_u32 v{vRedR}, s{sT0}, v{vG}")
    vXi = 48
    a(f"s_and_b32 s{sT0}, s{sKq}, 1", f"s_lshl_b32 s{sT0}, s{sT0}, 2", f"s_and_b32 s{sT1}, s{sKq}, 2", f"s_add_u32 s{sT0}, s{sT0}, s{sT1}",
      f"v_bfe_u32 v{t2}, v{lane}, 1, 3", f"v_xor_b32 v{t2}, s{sT0}, v{t2}", f"v_lshlrev_b32 v{t2}, 4, v{t2}",
      f"v_and_b32 v{vXi}, 31, v{lane}", f"v_lshl_add_u32 v{t2}, v{vXi}, 7, v{t2}",
      f"v_lshrrev_b32 v{vXi}, 5, v{lane}", f"v_lshl_add_u32 v{t2}, v{vXi}, 3, v{t2}",
      f"s_lshl_b32 s{sT0}, s{sMt}, 12", f"s_add_u32 s{sT0}, s{sT0}, {XIM}", f"v_add_u32 v{vXi}, s{sT0}, v{t2}",
      f"v_xor_b32 v{vXi+1}, 16, v{vXi}")
    a(f"s_lshl_b32 s{sT2}, s{sMtile}, 5", f"s_lshl_b32 s{sT1}, s{sKq}, 3", f"s_add_u32 s{sT2}, s{sT2}, s{sT1}",
      f"s_lshl_b32 s{sT2}, s{sT2}, 10", f"s_add_u32 s{sT2}, s{sT2}, {OF:#x}", f"s_add_u32 s{sT3}, s{sT2}, 4096",
      "s_waitcnt lgkmcnt(0)")
    poll(a, 1)
    a.stamp()
    for i in range(8):
        a(f"buffer_load_dwordx4 {v(of+4*i,4)}, v{vG}, {S_(rWS)}, s{sT2 if i < 4 else sT3} offen offset:{(i&3)*1024} {SC}")
    a(f"s_add_u32 m0, s{sM2}, {XIM}", "s_nop 0", f"buffer_load_dwordx4 v{vXr}, {S_(rX)}, 0 offen lds")
    for i in range(8):
        a(f"s_waitcnt vmcnt({8-i})")
        for n in range(2):
            a(mfma32(acc[n], wo + i * 8 + n * 4, of + 4 * i, "0" if i == 0 else None))
    a.stamp()
    def reduce4(acc, part):
        lab_hi = a.newlabel("redhi"); lab_j = a.newlabel("redj")
        a(f"s_cmp_ge_u32 s{sKq}, 2", f"s_cbranch_scc1 {lab_hi}")
        for half in range(2):
            if half: a.label(lab_hi)
            for d in (2, 1, 3):
                src = acc[d & 1] + 8 * (half ^ (d >> 1))
                a(f"ds_write_b128 v{vRedW[d-1]}, {v(src,4)}", f"ds_write_b128 v{vRedW[d-1]}, {v(src+4,4)} offset:1024")
            if half:
                for i in range(8): a(f"v_mov_b32 v{acc[0]+i}, v{acc[0]+8+i}")
            else:
                a(f"s_branch {lab_j}")
        a.label(lab_j)
        a("s_waitcnt vmcnt(0) lgkmcnt(0)", "s_barrier")
        for d in range(3):
            a(f"ds_read_b128 {v(part+8*d,4)}, v{vRedR} offset:{d*2048}", f"ds_read_b128 {v(part+8*d+4,4)}, v{vRedR} offset:{d*2048+1024}")
    part = 56
    a("s_nop 7", "s_nop 3")
    reduce4(acc, part)
    xr = 50 + 2
    a(f"ds_read_b64 {v(xr,2)}, v{vXi}", f"ds_read_b64 {v(xr+2,2)}, v{vXi+1}")
    A0 = acc[0]
    hres = 208
    a(f"s_and_b32 s{sT0}, s{sKq}, 1", f"s_lshl_b32 s{sT0}, s{sT0}, 1", f"s_lshr_b32 s{sT1}, s{sKq}, 1", f"s_add_u32 s{sT0}, s{sT0}, s{sT1}",
      f"s_lshl_b32 s{sT1}, s{sNs}, 2", f"s_add_u32 s{sT0}, s{sT0}, s{sT1}",
      f"s_lshl_b32 s{sT1}, s{sMtile}, 5", f"s_add_u32 s{sT0}, s{sT0}, s{sT1}",
      f"s_lshl_b32 s{sT1}, s{sT0}, 8", f"s_add_u32 s{sT1}, s{sT1}, {ST2:#x}",
      f"s_lshl_b32 s{sT0}, s{sT0}, 10", f"s_add_u32 s{sT0}, s{sT0}, {HF:#x}",
      f"v_and_b32 v{t0}, 31, v{lane}", f"v_lshrrev_b32 v{t1}, 5, v{lane}", f"v_lshlrev_b32 v{t1}, 2, v{t1}",
      f"v_lshl_add_u32 v{t0}, v{t0}, 3, v{t1}",
      "v_mov_b32 v44, 0", "v_mov_b32 v45, 0", "v_mov_b32 v46, 0x3f803f80",
      "s_waitcnt lgkmcnt(6)")
    for i in range(0, 8, 2): a(f"v_pk_add_f32 {v(A0+i,2)}, {v(A0+i,2)}, {v(part+i,2)}")
    a("s_waitcnt lgkmcnt(2)")
    for i in range(0, 8, 2): a(f"v_pk_add_f32 {v(part+8+i,2)}, {v(part+8+i,2)}, {v(part+16+i,2)}")
    a("s_waitcnt lgkmcnt(0)")
    for i in range(4): a(f"v_lshlrev_b32 v{part+2*i}, 16, v{xr+i}", f"v_and_b32 v{part+2*i+1}, 0xffff0000, v{xr+i}")
    for i in range(0, 8, 2): a(f"v_pk_add_f32 {v(A0+i,2)}, {v(A0+i,2)}, {v(part+8+i,2)}")
    for i in range(0, 8, 2): a(f"v_pk_add_f32 {v(A0+i,2)}, {v(A0+i,2)}, {v(part+i,2)}")
    for i in range(4): a(f"v_cvt_pk_bf16_f32 v{hres+i}, v{A0+2*i}, v{A0+2*i+1}")
    a(f"buffer_store_dwordx4 {v(hres,4)}, v{vG}, {S_(rWS)}, s{sT0} offen {SC}")
    for i in range(4): a(f"v_dot2c_f32_bf16 v44, v{hres+i}, v46", f"v_dot2c_f32_bf16 v45, v{hres+i}, v{hres+i}")
    a("s_nop 3", "v_permlane32_swap_b32 v44, v45", "s_nop 1", "v_add_f32 v44, v44, v45", "s_nop 0",
      f"buffer_store_dword v44, v{t0}, {S_(rWS)}, s{sT1} offen {SC}")
    a("s_waitcnt vmcnt(0)", "s_barrier")
    signal(a, 2, sX, sJ)
    a.stamp()
    wd0 = 212
    def wd_dma(kexpr_add, lds_const, par, mbase):
        a(f"s_lshl_b32 s{sT0}, s{sKq}, 14", f"s_add_u32 s{sT0}, s{sT0}, {kexpr_add*16384 + par*8192}",
          f"s_add_u32 m0, s{mbase}, {lds_const}", "s_nop 0",
          f"buffer_load_dwordx4 v{vWo}, {S_(rWD)}, s{sT0} offen lds")
    a(f"s_lshl_b32 s{sT3}, s{sWv}, 12")
    for i in range(2):
        for par in range(2):
            wd_dma(4 * i, i * 2048 + par * 1024, par, sT3)
    vR4, vSel4 = 10, 16
    CP, CF = 57344, 57344 + 3072
    wf4 = [[20, 24, 28], [32, 36, 40]]
    cacc = [44, 48, 52]
    a(f"v_bfe_u32 v{t0}, v{lane}, 2, 2", f"v_lshrrev_b32 v{t1}, 5, v{lane}", f"v_bfe_u32 v{t2}, v{lane}, 4, 1",
      f"v_xor_b32 v{t1}, v{t1}, v{t2}", f"v_lshl_add_u32 v{t0}, v{t1}, 2, v{t0}",
      f"v_lshlrev_b32 v{t0}, 5, v{t0}", f"v_lshl_add_u32 v{t0}, v{t2}, 10, v{t0}",
      f"v_and_b32 v{t1}, 3, v{lane}", f"v_lshl_add_u32 v{t0}, v{t1}, 3, v{t0}",
      f"v_add_u32 v{vR4}, 0x10000, v{t0}", f"v_add_u32 v{vR4+197}, {0x10000 + 49152}, v{t0}",
      f"s_mul_i32 s{sT0}, s{sWv}, 12288", f"v_add_u32 v{t2}, s{sT0}, v{vR4}")
    vR4h = vR4 + 197
    make_sel(a, vSel4, lane, t0, t1)
    for r in range(12): a(f"v_mov_b32 v{cacc[0]+r}, 0")
    cw = 56
    for k in range(4):
        for ft in range(3):
            o = (k >> 1) * 6144 + ft * 2048 + (k & 1) * 512
            a(f"ds_read_b64_tr_b16 {v(cw+k*12+ft*4,2)}, v{t2} offset:{o}", f"ds_read_b64_tr_b16 {v(cw+k*12+ft*4+2,2)}, v{t2} offset:{o+256}")
        if k >= 1:
            a("s_waitcnt lgkmcnt(6)")
            for ft in range(3): a(mfma16(cacc[ft], vSel4, cw + (k - 1) * 12 + ft * 4))
    a("s_waitcnt lgkmcnt(0)")
    for ft in range(3): a(mfma16(cacc[ft], vSel4, cw + 36 + ft * 4))
    a(f"s_mul_i32 s{sT0}, s{sWv}, 384", f"s_add_u32 s{sT0}, s{sT0}, {CP}", f"v_lshl_add_u32 v{t0}, v{lane}, 2, s{sT0}",
      f"v_add_u32 v{t1}, s{sT3}, v{vR[0]}", f"v_add_u32 v{t2}, s{sT3}, v{vR[1]}",
      "s_waitcnt vmcnt(0)")
    for i in range(2):
        for n in range(2):
            a(f"ds_read_b64_tr_b16 {v(wd0+i*8+n*4,2)}, v{t1+n} offset:{i*2048}",
              f"ds_read_b64_tr_b16 {v(wd0+i*8+n*4+2,2)}, v{t1+n} offset:{i*2048+1024}")
    a("s_mov_b64 exec, 0xffff")
    for ft in range(3):
        a(f"ds_write2_b32 v{t0}, v{cacc[ft]}, v{cacc[ft]+1} offset0:{ft*32} offset1:{ft*32+16}")
    a("s_mov_b64 exec, -1")
    sM4, sH = sKo, sC
    st = 56
    hf = 96
    acc4 = [128, 144, 160]
    a(f"s_lshl_b32 s{sM4}, s{sX}, 3", f"s_add_u32 s{sM4}, s{sM4}, s{sWv}",
      f"s_lshl_b32 s{sH}, s{sM4}, 15", f"s_add_u32 s{sH}, s{sH}, {HF:#x}",
      f"s_lshl_b32 s{sT2}, s{sM4}, 13", f"s_add_u32 s{sT2}, s{sT2}, {ST2:#x}",
      f"v_and_b32 v{t0}, 31, v{lane}", f"v_lshlrev_b32 v{t0}, 3, v{t0}", f"v_lshrrev_b32 v{t1}, 5, v{lane}",
      f"v_lshl_add_u32 v179, v{t1}, 12, v{t0}",
      f"s_mul_i32 s{sT0}, s{sWv}, 48", f"s_add_u32 s{sT0}, s{sT0}, {CP}", f"v_lshl_add_u32 v{t2}, v{lane}, 2, s{sT0}",
      "s_waitcnt lgkmcnt(0)")
    a(f"s_mov_b32 s{sG}, s{sT2}")
    poll(a, 2)
    a.stamp()
    q = Q()
    a(f"s_cmp_ge_u32 s{sJ}, 29", "s_cbranch_scc1 L_p4_idle")
    def issueH(k):
        a(f"buffer_load_dwordx4 {v(hf+4*(k&7),4)}, v{vG}, {S_(rWS)}, s{sH} offen offset:{(k&3)*1024} {SC}")
        if k & 3 == 3: a(f"s_add_u32 s{sH}, s{sH}, 4096")
        q.push(f"h{k}")
    for k in range(8): issueH(k)
    a("s_mov_b64 exec, 0xfff")
    for i in range(4):
        a(f"ds_read2_b32 {v(44+2*i,2)}, v{t2} offset0:{i*192} offset1:{i*192+96}" if i < 1 else
          f"ds_read_b32 v{44+2*i}, v{t2} offset:{i*768}\nds_read_b32 v{45+2*i}, v{t2} offset:{i*768+384}")
    a("s_waitcnt lgkmcnt(0)", "v_pk_add_f32 v[44:45], v[44:45], v[46:47]", "v_pk_add_f32 v[48:49], v[48:49], v[50:51]",
      "v_pk_add_f32 v[44:45], v[44:45], v[48:49]", "v_add_f32 v44, v44, v45", "s_nop 0",
      f"ds_write_b32 v{t2}, v44 offset:{CF - CP}", "s_mov_b64 exec, -1")
    def reads4(ks, b):
        for ft in range(3):
            o = (ks >> 1) * 6144 + ft * 2048 + (ks & 1) * 512
            r = vR4
            if o >= 49152: o -= 49152; r = vR4h
            a(f"ds_read_b64_tr_b16 {v(wf4[b][ft],2)}, v{r} offset:{o}", f"ds_read_b64_tr_b16 {v(wf4[b][ft]+2,2)}, v{r} offset:{o+256}")
    def issueWdA(k):
        i = 2 + k
        a(f"s_lshl_b32 s{sT0}, s{sWv}, 13", f"s_add_u32 s{sT0}, s{sT0}, {4*i*16384}",
          f"s_add_u32 m0, s{sM2}, {k*8192}", "s_nop 0",
          f"buffer_load_dwordx4 v{vWo}, {S_(rWD)}, s{sT0} offen lds")
        q.push("WdA")
    reads4(0, 0)
    for ks in range(32):
        b = ks & 1
        if ks < 31:
            reads4(ks + 1, b ^ 1)
            a(f"s_waitcnt vmcnt({q.n_after(f'h{ks}')}) lgkmcnt(6)")
        else:
            a(f"s_waitcnt vmcnt({q.n_after(f'h{ks}')}) lgkmcnt(0)")
        for ft in range(3):
            a(mfma32(acc4[ft], wf4[b][ft], hf + 4 * (ks & 7), "0" if ks == 0 else None))
        if ks + 8 < 32: issueH(ks + 8)
        if 4 <= ks < 20:
            i = ks - 4
            a(f"buffer_load_dwordx2 {v(st+2*i,2)}, v179, {S_(rWS)}, s{sG} offen offset:{i*256} {SC}")
            q.push("st")
        if ks >= 20 and ks < 27: issueWdA(ks - 20)
    a.stamp()
    a(f"s_waitcnt vmcnt({q.n_after('st')})")
    for i in range(1, 16):
        a(f"v_pk_add_f32 {v(st,2)}, {v(st,2)}, {v(st+2*i,2)}")
    a(f"v_mov_b32 v{st+2}, v{st}", f"v_mov_b32 v{st+3}, v{st+1}",
      f"v_lshrrev_b32 v{t0}, 5, v{lane}", f"v_lshlrev_b32 v{t0}, 4, v{t0}", f"v_add_u32 v{t0}, {CF}, v{t0}",
      f"v_permlane32_swap_b32 v{st}, v{st+2}", f"v_permlane32_swap_b32 v{st+1}, v{st+3}",
      f"s_mov_b32 s{sT1}, 0x3b000000", "s_barrier")
    cv = 60
    mu, r2 = 20, 22
    for ft in range(3):
        for gg in range(4):
            a(f"ds_read_b128 {v(cv+ft*16+gg*4,4)}, v{t0} offset:{ft*128+gg*32}")
    def issueWdB(i):
        o = 65536 + (i - 9) * 8192 if i < 21 else 57344
        a(f"s_lshl_b32 s{sT0}, s{sWv}, 13", f"s_add_u32 s{sT0}, s{sT0}, {4*i*16384}",
          f"s_add_u32 m0, s{sM2}, {o}", "s_nop 0",
          f"buffer_load_dwordx4 v{vWo}, {S_(rWD)}, s{sT0} offen lds")
    a(f"v_pk_add_f32 {v(st,2)}, {v(st,2)}, {v(st+2,2)}", "s_nop 0",
      f"v_mul_f32 v{mu}, s{sT1}, v{st}", f"v_mul_f32 v{r2}, s{sT1}, v{st+1}",
      f"v_fma_f32 v{r2}, -v{mu}, v{mu}, v{r2}", f"v_max_f32 v{r2}, 0, v{r2}", f"v_add_f32 v{r2}, 0x3727c5ac, v{r2}",
      f"v_rcp_f32 v{r2}, v{r2}",
      f"s_mul_i32 s{sT2}, s{sM4}, 86", f"s_mul_i32 s{sT1}, s{sJ}, 3", f"s_add_u32 s{sT2}, s{sT2}, s{sT1}",
      f"s_lshl_b32 s{sT2}, s{sT2}, 10", f"s_add_u32 s{sT2}, s{sT2}, {GF:#x}")
    go = 24
    for ft in range(3):
        A = acc4[ft]
        a(f"s_waitcnt lgkmcnt({8 - 4*ft})")
        for i in range(0, 16, 2):
            a(f"v_pk_fma_f32 {v(A+i,2)}, {v(cv+ft*16+i,2)}, {v(mu,2)}, {v(A+i,2)} op_sel_hi:[1,0,1] neg_lo:[0,1,0] neg_hi:[0,1,0]")
        for i in range(8): a(f"v_max_f32 v{A+i}, 0, v{A+i}")
        for i in range(0, 8, 2): a(f"v_pk_mul_f32 {v(A+8+i,2)}, {v(A+8+i,2)}, {v(r2,2)} op_sel_hi:[1,0]")
        for i in range(0, 8, 2): a(f"v_pk_mul_f32 {v(A+i,2)}, {v(A+i,2)}, {v(A+8+i,2)}")
        for i in range(4): a(f"v_cvt_pk_bf16_f32 v{go+4*ft+i}, v{A+2*i}, v{A+2*i+1}")
        if ft == 2:
            a(f"s_cmp_ge_u32 s{sJ}, 28", "s_cbranch_scc1 L_p4_end")
        a(f"buffer_store_dwordx4 {v(go+4*ft,4)}, v{vG}, {S_(rWS)}, s{sT2} offen offset:{ft*1024} {SC}")
    a("s_branch L_p4_end")
    a.label("L_p4_idle")
    for k in range(7): issueWdA(k)
    a.stamp(a.nst - 1)
    a("s_barrier")
    a.label("L_p4_end")
    a("s_waitcnt vmcnt(0)", "s_barrier")
    lab = a.newlabel("nosig")
    a(f"s_cmp_ge_u32 s{sJ}, 29", f"s_cbranch_scc1 {lab}")
    signal(a, 3, sX, sJ)
    a.label(lab)
    a.stamp()
    for i in range(9, 22): issueWdB(i)
    gf = 96
    D5 = 12
    wf5 = [[48, 52], [56, 60]]
    acc5 = [16, 32]
    sGo = sH
    vRA = [172, 173]; vRB = [174, 175]
    a(f"s_mul_i32 s{sGo}, s{sMtile}, 86", f"s_add_u32 s{sGo}, s{sGo}, s{sKq}", f"s_lshl_b32 s{sGo}, s{sGo}, 10", f"s_add_u32 s{sGo}, s{sGo}, {GF:#x}",
      f"s_lshl_b32 s{sT0}, s{sKq}, 11",
      f"v_add_u32 v{vRA[0]}, s{sT0}, v{vR[0]}", f"v_add_u32 v{vRA[1]}, s{sT0}, v{vR[1]}",
      f"s_add_u32 s{sT0}, s{sT0}, 0x10000",
      f"v_add_u32 v{vRB[0]}, s{sT0}, v{vR[0]}", f"v_add_u32 v{vRB[1]}, s{sT0}, v{vR[1]}",
      f"v_add_u32 v{vRB[0]+2}, 0xc000, v{vRB[0]}", f"v_add_u32 v{vRB[1]+2}, 0xc000, v{vRB[1]}")
    vRC = [vRB[0] + 2, vRB[1] + 2]
    vOut = 178
    a(f"v_and_b32 v{t0}, 31, v{lane}", f"v_lshrrev_b32 v{t1}, 5, v{lane}", f"v_lshlrev_b32 v{t1}, 4, v{t1}",
      f"v_lshl_add_u32 v{t0}, v{t0}, 10, v{t1}",
      f"s_lshl_b32 s{sT0}, s{sMtile}, 15", f"s_lshl_b32 s{sT1}, s{sNs}, 7", f"s_add_u32 s{sT0}, s{sT0}, s{sT1}",
      f"s_and_b32 s{sT1}, s{sKq}, 1", f"s_lshl_b32 s{sT1}, s{sT1}, 6", f"s_add_u32 s{sT0}, s{sT0}, s{sT1}",
      f"s_lshr_b32 s{sT1}, s{sKq}, 1", f"s_lshl_b32 s{sT1}, s{sT1}, 5", f"s_add_u32 s{sT0}, s{sT0}, s{sT1}",
      f"v_add_u32 v{vOut}, s{sT0}, v{t0}",
      f"s_cmp_lt_u32 s{sKq}, 2", f"s_cselect_b32 s{sG}, 0, 0x40000000")
    poll(a, 3, 29)
    a.stamp()
    q = Q()
    def issueG(i):
        if i == 21: a(f"s_add_u32 s{sGo}, s{sGo}, s{sG}")
        a(f"buffer_load_dwordx4 {v(gf+4*(i%D5),4)}, v{vG}, {S_(rWS)}, s{sGo} offen {SC}", f"s_add_u32 s{sGo}, s{sGo}, 4096")
        q.push(f"g{i}")
    def reads5(i):
        b = i & 1
        if i < 9: r, o = vRA, (i - 2) * 8192
        elif i < 15: r, o = vRB, (i - 9) * 8192
        elif i < 21: r, o = vRC, (i - 15) * 8192
        else: r, o = vRA, 57344
        for n in range(2):
            a(f"ds_read_b64_tr_b16 {v(wf5[b][n],2)}, v{r[n]} offset:{o}", f"ds_read_b64_tr_b16 {v(wf5[b][n]+2,2)}, v{r[n]} offset:{o+1024}")
    for i in range(D5): issueG(i)
    for i in range(22):
        b = i & 1
        if i == 8:
            a(f"s_waitcnt vmcnt({q.n_after('g8')}) lgkmcnt(0)", "s_barrier")
        if 1 <= i < 21: reads5(i + 1)
        lg = "" if i < 2 else (" lgkmcnt(4)" if i < 21 else " lgkmcnt(0)")
        a(f"s_waitcnt vmcnt({q.n_after(f'g{i}')}){lg}")
        for n in range(2):
            w = wd0 + i * 8 + n * 4 if i < 2 else wf5[b][n]
            a(mfma32(acc5[n], w, gf + 4 * (i % D5), "0" if i == 0 else None))
        if i + D5 < 22: issueG(i + D5)
    a.stamp()
    a("s_nop 7", "s_nop 3")
    reduce4(acc5, part)
    for i in range(4): a(f"v_lshlrev_b32 v{48+2*i}, 16, v{hres+i}", f"v_and_b32 v{48+2*i+1}, 0xffff0000, v{hres+i}")
    for i in range(0, 8, 2): a(f"v_pk_add_f32 {v(A0+i,2)}, {v(A0+i,2)}, {v(48+i,2)}")
    a("s_waitcnt lgkmcnt(4)")
    for i in range(0, 8, 2): a(f"v_pk_add_f32 {v(A0+i,2)}, {v(A0+i,2)}, {v(part+i,2)}")
    a("s_waitcnt lgkmcnt(0)")
    for i in range(0, 8, 2): a(f"v_pk_add_f32 {v(part+8+i,2)}, {v(part+8+i,2)}, {v(part+16+i,2)}")
    for i in range(0, 8, 2): a(f"v_pk_add_f32 {v(A0+i,2)}, {v(A0+i,2)}, {v(part+8+i,2)}")
    for i in range(4): a(f"v_cvt_pk_bf16_f32 v{48+i}, v{A0+2*i}, v{A0+2*i+1}")
    a("s_nop 1", "v_permlane32_swap_b32 v48, v50", "v_permlane32_swap_b32 v49, v51",
      f"buffer_store_dwordx4 v[48:51], v{vOut}, {S_(rOUT)}, 0 offen")
    a.stamp_flush()
    a.label(done)
    a("s_endpgm")
    a.label("L_att_slow")
    m, mn, al, vV = 93, 94, 95, 92
    a(f"s_mov_b32 s{sSlow}, 1", f"v_mov_b32 v{m}, 0xff800000", f"v_subrev_u32 v{vV}, 0x2000, v{vVA}",
      f"s_lshl_b32 s{sT2}, s{sHead}, 16", f"s_add_u32 s{sT3}, s{sT2}, {VF:#x}", f"s_add_u32 s{sT2}, s{sT2}, {KF:#x}",
      f"s_mov_b32 s{sT1}, 0")
    for r in range(16): a(f"v_mov_b32 v{O+r}, 0")
    a.label("L_att_sloop")
    a(f"buffer_load_dwordx4 {v(Kb[0],4)}, v{vG}, {S_(rWS)}, s{sT2} offen {SC}",
      f"s_mov_b64 exec, s[{em}:{em+1}]",
      f"buffer_load_dwordx4 {v(Vb[0][0],4)}, v{vV}, {S_(rWS)}, s{sT3} offen {SC}",
      f"buffer_load_dwordx4 {v(Vb[0][1],4)}, v{vV}, {S_(rWS)}, s{sT3} offen offset:512 {SC}",
      "s_mov_b64 exec, -1",
      f"s_add_u32 s{sT2}, s{sT2}, 1024", f"s_add_u32 s{sT3}, s{sT3}, 1024",
      "s_waitcnt vmcnt(0)", mfma32(S[0], Kb[0], Qr, "0"), "s_nop 15")
    a(f"v_max3_f32 v{mn}, v{S[0]}, v{S[0]+1}, v{m}")
    for r in range(2, 16, 2): a(f"v_max3_f32 v{mn}, v{S[0]+r}, v{S[0]+r+1}, v{mn}")
    a(f"v_mov_b32 v{t0}, v{mn}", "s_nop 1", f"v_permlane32_swap_b32 v{t0}, v{mn}", "s_nop 1",
      f"v_max_f32 v{mn}, v{t0}, v{mn}", f"v_sub_f32 v{al}, v{m}, v{mn}", f"v_exp_f32 v{al}, v{al}", f"v_mov_b32 v{m}, v{mn}")
    for r in range(16): a(f"v_sub_f32 v{S[0]+r}, v{S[0]+r}, v{mn}")
    for r in range(16): a(E(S[0] + r))
    for r in range(16): a(f"v_mul_f32 v{O+r}, v{O+r}, v{al}")
    a("s_nop 1", SM(0, 0, 0), SM(0, 1, 0),
      f"s_add_u32 s{sT1}, s{sT1}, 1", f"s_cmp_lt_u32 s{sT1}, 64", "s_nop 15", "s_cbranch_scc1 L_att_sloop",
      "s_branch L_att_fin")
    return dict(name=NAME, grid=256, block=512, lds=LDS, vgpr=232)

def build(diag=False):
    a = Asm(diag)
    k = gen(a)
    ref = open("sequential_preLN__softmax_full_mha__glu_gated_reglu__prompt.s.ref").read().split("\n")
    out = "\n".join(ref[:11]) + "\n"
    out += f"; @launch grid=({k['grid']},1,1) block=({k['block']},1,1) lds={k['lds']}\n"
    out += '.amdgcn_target "amdgcn-amd-amdhsa--gfx950"\n.text\n' + a.text() + '.section .rodata,"a"\n'
    out += kernel_desc(k["name"], 256 if diag else k["vgpr"], 100)
    return out, a.nst
if __name__ == "__main__":
    p = sys.argv[1] if len(sys.argv) > 1 else "fused.s"
    open(p, "w").write(build()[0])
    d, n = build(True)
    open("diag.s", "w").write(d)
    print("stamps", n)
```
